```python
import torch

def _softmax(x, axis=-1):
    return torch.softmax(x, dim=axis)
def _gelu(x):
    return torch.nn.functional.gelu(x, approximate="tanh")
def _silu(x):
    return torch.nn.functional.silu(x)
def _sigmoid(x):
    return torch.sigmoid(x)
def _layernorm(x, axis=-1, eps=1e-5):
    m = x.mean(dim=axis, keepdim=True)
    v = x.var(dim=axis, keepdim=True, unbiased=False)
    return (x - m) / torch.sqrt(v + eps)
def _scatter_add(tgt, idx, src, axis=0):
    return tgt.clone().index_add_(axis, idx, src)
def _segment_sum(src, seg, n):
    out = torch.zeros((n,) + src.shape[1:], dtype=src.dtype)
    return out.index_add_(0, seg, src)
def _pad(x, pw):
    flat = tuple(v for pair in reversed(pw) for v in pair)
    return torch.nn.functional.pad(x, flat)

kernel_name = 'standalone__mha_block_cached__near_ridge'

def setup_inputs():

    _w = (lambda a: (lambda t: t.to(torch.bfloat16) if t.is_floating_point() else t)(torch.as_tensor(a)))
    B, Sq, D = 32, 128, 448
    H, Sk, Dh = 16, 512, 256
    return {
        "x": _w((lambda *s: torch.randn(*s, dtype=torch.bfloat16) * 0.8)(B, Sq, D)),
        "k_cache": _w((lambda *s: torch.randn(*s, dtype=torch.bfloat16) * 0.8)(B, H, Sk, Dh)),
        "v_cache": _w((lambda *s: torch.randn(*s, dtype=torch.bfloat16) * 0.05)(B, H, Sk, Dh)),
        "wq": _w((lambda *s: torch.randn(*s, dtype=torch.bfloat16) * 0.8)(D, H * Dh) * (D ** -0.5)),
        "wo": _w((lambda *s: torch.randn(*s, dtype=torch.bfloat16) * 0.05)(H * Dh, D) * ((H * Dh) ** -0.5)),
    }

def reference(x, k_cache, v_cache, wq, wo):
    B, Sq, D = x.shape
    H, Dh = 16, 256
    q = (lambda x, *d: x.permute(*d))((x @ wq).reshape(B, Sq, H, Dh), 0, 2, 1, 3)
    scores = torch.einsum("bhqd,bhkd->bhqk", q, k_cache) * (Dh ** -0.5)
    p = _softmax(scores, axis=-1)
    o = torch.einsum("bhqk,bhkd->bhqd", p, v_cache)
    return (lambda x, *d: x.permute(*d))(o, 0, 2, 1, 3).reshape(B, Sq, H * Dh) @ wo
```

```python
import sys, re, argparse
from gl import Asm, kernel_begin, kernel_desc

class Opt:
    PD = 6
    T = 4
    bar2 = False
    stamps = False
    wtouch = True
    dump = None
    share = True
    thr = 10.0

PITCH = 1056
SLOT = 16 * PITCH
NKV = 5
WSLOT = SLOT + 8192
WBASE = NKV * SLOT
LDS_BYTES = WBASE + 3 * WSLOT
FR0 = 224

def P(j, qb): return 8 * j + 4 * qb
def QACC(db, qb): return 8 * db + 4 * qb
def Q(s, qb): return 128 + 8 * s + 4 * qb
def OACC(db, qb): return 128 + 8 * db + 4 * qb
def OBF(u, qb): return 160 + 8 * u + 4 * qb
def LL(qb): return 176 + 4 * qb
ONES = 184
def RL(qb): return 188 + qb
def S(par, kb, qb): return 192 + 16 * par + 8 * kb + 4 * qb
def XF(par, qb): return 192 + 8 * par + 4 * qb
VWQ = 208
VX = 212
def NEGM(qb): return 224 + 4 * qb
vKA, vTR, vXA = 232, 233, 234
vAKV = [235, 236]
vAW = [237, 238]
vAX = 239
vD = 240
vDELTA = 244
vT0, vT1 = 245, 246
vDUM = 247
vT128, vT512, vTWQ, vTCUR = 248, 249, 250, 251
vWQ0, vX0, vWO = 248, 249, 250
vT2, vT3 = 254, 255
def OUT(half, nb, qb): return (half * 14 + nb) * 8 + 4 * qb

sK, sV, sWQ, sWO, sX, sO, sCD, sCT = 4, 8, 12, 16, 20, 24, 28, 32
sKVS = 36
sWS = 41
sB1, sB2, sWB1, sWB2, sXB = 44, 45, 46, 47, 48
sHO, sHEAD, sLC = 49, 50, 51
sT0, sT1 = 52, 53
sDO, sDS = 54, 55
sTO, sTS = 56, 57
sRET = 58
sWQO, sXO, sWOO = 60, 61, 62
sC, sTHR = 63, 64
sTMP = 65
sWAVE = 66
sST = 68
NSTAMP = 14

def vr(b, n=4): return "v[%d:%d]" % (b, b + n - 1)
def ar(b, n=4): return "a[%d:%d]" % (b, b + n - 1)
def sr(b, n=4): return "s[%d:%d]" % (b, b + n - 1)
MF = "v_mfma_f32_16x16x32_bf16"

class It:
    __slots__ = ("k", "t", "tag", "lo", "hi")
    def __init__(self, k, t, tag=None, lo=0, hi=10**9):
        self.k, self.t, self.tag, self.lo, self.hi = k, t, tag, lo, hi
def V(t, lo=0, hi=10**9): return It("v", t, None, lo, hi)
def E(t, lo=0, hi=10**9): return It("e", t, None, lo, hi)
def SC(t): return It("s", t)
def VM(t, tag=None): return It("vm", t, tag)

class Seg:
    def __init__(self, name):
        self.name = name
        self.frags = []
        self.xreads = []
        self.mf = []
        self.bar = False
        self.vmtags = []
        self.setup = []
        self.at = {}
        self.vq = []
        self.sq = []
        self.freebar = False
    def put(self, gap, *items):
        self.at.setdefault(gap, []).extend(items)

def gap_cost(items):
    D = sum(1 for i in items if i.k == "ds"); M = sum(1 for i in items if i.k == "vm")
    Sn = sum(1 for i in items if i.k in ("s", "lgw", "vmw", "bar"))
    Vn = sum(1 if i.k == "v" else 2 if i.k == "e" else 0 for i in items)
    if D + M == 0:
        c = (8 + 4 * Vn + 4 * max(0, Sn - 1)) if Vn else 4 + 4 * Sn
    else:
        c = 4 + 8 * (D + M) + 4 * (Sn + Vn)
        if D == 0: c += 4
    return max(16, c)

ORDER = {"ds": 0, "vmw": 1, "bar": 2, "s": 3, "lgw": 3, "vm": 4, "v": 5, "e": 5}

class Role:
    def __init__(self, role, opt):
        self.role = role
        self.opt = opt
        self.static = {}
        self.order = []
        self.trace = []
        self.cur = None
        self.fbase = 0
        self.kvrot = 0
        self.wrot = 0
        self.cost = {}
        self.nstamp = 0
    def begin(self, name):
        self.cur = name; self.idx = 0
        self.first = name not in self.static
        if self.first:
            self.static[name] = []; self.order.append(name); self.cost[name] = 0
    def out(self, it):
        t = it.t() if callable(it.t) else it.t
        if self.first: self.static[self.cur].append((it.k, t))
        else:
            assert self.static[self.cur][self.idx] == (it.k, t), (self.cur, self.idx, self.static[self.cur][self.idx], (it.k, t))
        self.trace.append((self.cur, self.idx, it, t))
        self.idx += 1
    def raw(self, *items):
        for it in items:
            self.out(it)
            if self.first and it.k != "lab": self.cost[self.cur] += 8 if it.k in ("e", "vm", "ds") else 4
    def kvs(self, n): return "s%d" % (sKVS + (n - self.kvrot) % NKV)
    def ws(self, i): return "s%d" % (sWS + (i - self.wrot) % 3)
    def rot_kv(self, by):
        by %= NKV
        assert by == 4
        def upd():
            self.kvrot += 4
            return "s_mov_b32 s%d, s%d" % (sKVS, sTMP)
        L = [SC("s_mov_b32 s%d, s%d" % (sTMP, sKVS + 4))]
        for k in range(4, 0, -1): L.append(SC("s_mov_b32 s%d, s%d" % (sKVS + k, sKVS + k - 1)))
        L.append(SC(upd))
        return L
    def rot_w(self, by):
        by %= 3
        if by == 0: return []
        if by == 1:
            def upd():
                self.wrot += 1
                return "s_mov_b32 s%d, s%d" % (sWS + 2, sTMP)
            return [SC("s_mov_b32 s%d, s%d" % (sTMP, sWS)), SC("s_mov_b32 s%d, s%d" % (sWS, sWS + 1)), SC("s_mov_b32 s%d, s%d" % (sWS + 1, sWS + 2)), SC(upd)]
        def upd():
            self.wrot += 2
            return "s_mov_b32 s%d, s%d" % (sWS, sTMP)
        return [SC("s_mov_b32 s%d, s%d" % (sTMP, sWS + 2)), SC("s_mov_b32 s%d, s%d" % (sWS + 2, sWS + 1)), SC("s_mov_b32 s%d, s%d" % (sWS + 1, sWS)), SC(upd)]
    def stamp(self):
        if not self.opt.stamps: return
        pass

    def freg(self, F): return FR0 + 4 * (F % 8)
    def reads_of(self, seg, f, F):
        r = self.freg(F)
        return [It("ds", tpl(r), ("f", F)) for tpl in seg.frags[f]]
    def head_reads(self, nxt, Fn):
        L = []
        if nxt.bar:
            L.append((0, It("sync", None, nxt.vmtags)))
        for t in nxt.xreads: L.append((0, It("ds", t, ("x", Fn))))
        for f in range(self.opt.PD):
            for it in self.reads_of(nxt, f, Fn + f): L.append((f, it))
        return L
    def prime(self, nxt):
        self.raw(*nxt.setup)
        for f, it in self.head_reads(nxt, self.fbase):
            if it.k == "sync":
                self.raw(It("vmw", None, it.tag), It("bar", "s_barrier"))
            else: self.raw(it)
        self.raw(It("lgw", None, ("f", self.fbase + 1)))

    def seg(self, seg, nxt):
        PD = self.opt.PD
        nf = len(seg.frags); n = len(seg.mf); F0 = self.fbase
        assert nf % 2 == 0
        rq = []
        for f in range(PD, nf):
            for it in self.reads_of(seg, f, F0 + f): rq.append((f, it))
        for f, it in self.head_reads(nxt, F0 + nf): rq.append((nf + f, it))
        gaps = [[] for _ in range(n)]
        cf = -1
        first_next_gap = None
        for i in range(n):
            if seg.mf[i][0] is not None: cf = seg.mf[i][0]
            nrd = sum(1 for _, it in rq if it.k == "ds")
            want = 1
            if nrd > (n - i): want = 2
            if i == n - 1: want = 99
            while rq and want > 0 and (rq[0][0] <= max(cf, 0) + PD or i == n - 1):
                f, it = rq.pop(0)
                assert it.k == "ds"
                gaps[i].append(it); want -= 1
                if f >= nf and first_next_gap is None: first_next_gap = i
                if rq and rq[0][1].k == "sync":
                    _, sy = rq.pop(0)
                    gaps[i].append(It("vmw", None, sy.tag)); gaps[i].append(It("bar", "s_barrier"))
                    break
            if i + 1 < n:
                fn = seg.mf[i + 1][0]
                if fn is not None and fn != cf and fn % 2 == 0: gaps[i].append(It("lgw", None, ("f", F0 + fn + 1)))
            else:
                gaps[i].append(It("lgw", None, ("f", F0 + nf + 1)))
        assert not rq
        if seg.freebar and self.opt.bar2:
            gaps[0].append(It("bar", "s_barrier"))
        for g, items in seg.at.items():
            gaps[g if g >= 0 else n + g].extend(items)
        vq = [It(x.k, x.t, None, 0, max(0, first_next_gap - 2)) for x in nxt.setup]
        vq = sorted(seg.vq + vq, key=lambda x: 0)
        own = list(seg.vq); setup = [It(x.k, x.t, None, 0, max(0, first_next_gap - 2)) for x in nxt.setup]
        def fits(g, it): return gap_cost(gaps[g] + [it]) <= max(16, gap_cost(gaps[g]))
        def place(q, endgap):
            q = list(q)
            g = 0
            while q:
                it = q[0]
                g = max(g, it.lo)
                hi = min(it.hi, endgap)
                assert g <= hi, (seg.name, it.t, g, hi)
                if fits(g, it):
                    gaps[g].append(it); q.pop(0); continue
                if g >= hi or not feasible(q, g + 1, endgap):
                    gaps[g].append(it); q.pop(0)
                    if q and g < min(q[0].hi, endgap) and (feasible(q, g + 1, endgap) or spread_ok(q, g + 1, endgap)): g += 1
                    continue
                g += 1
        def feasible(q, g, endgap):
            tmp = {}
            for it in q:
                g = max(g, it.lo)
                hi = min(it.hi, endgap)
                while True:
                    if g > hi: return False
                    base = gaps[g] + tmp.get(g, [])
                    if gap_cost(base + [it]) <= max(16, gap_cost(base)):
                        tmp.setdefault(g, []).append(it); break
                    g += 1
            return True
        def spread_ok(q, g, endgap):
            for it in q:
                g = max(g, it.lo)
                if g > min(it.hi, endgap): return False
                g += 1
            return True
        place(seg.sq, n - 1)
        place(setup, n - 1)
        place(own, n - 1)
        for i in range(n):
            f, tpl = seg.mf[i]
            self.out(It("m", tpl.replace("{A}", ar(self.freg(F0 + f)) if f is not None else "")))
            items = sorted(gaps[i], key=lambda x: ORDER[x.k])
            if self.first: self.cost[self.cur] += gap_cost(items)
            for it in items: self.out(it)
        self.fbase += nf

    def resolve(self):
        need = {}
        cnt = {"ds": 0, "vm": 0}; last = {}
        for (blk, idx, it, t) in self.trace:
            if it.k in ("ds", "vm"):
                cnt[it.k] += 1
                if it.tag is not None: last[it.tag] = cnt[it.k]
            elif it.k == "lgw":
                assert it.tag in last, it.tag
                N = min(15, cnt["ds"] - last[it.tag])
                need[(blk, idx)] = min(need.get((blk, idx), 99), N)
            elif it.k == "vmw":
                ns = [cnt["vm"] - last[tg] for tg in it.tag if tg in last]
                N = min([63] + ns) if ns else 99
                need[(blk, idx)] = min(need.get((blk, idx), 99), N)
        self.need = need
    def text_of(self, blk, idx, k, t):
        if k == "lgw": return "s_waitcnt lgkmcnt(%d)" % self.need[(blk, idx)]
        if k == "vmw":
            N = self.need[(blk, idx)]
            return None if N == 99 else "s_waitcnt vmcnt(%d)" % N
        return t
    def emit(self, a):
        for blk in self.order:
            a("; ---- %s %s (est %d cyc)" % (self.role, blk, self.cost[blk]))
            for idx, (k, t) in enumerate(self.static[blk]):
                t = self.text_of(blk, idx, k, t)
                if t is None: continue
                if k == "lab": a.label(t)
                else: a(t)

REG = re.compile(r"\b([vas])(\d+)\b|\b([vas])\[(\d+):(\d+)\]")
def regs_in(tok):
    out = set()
    for m in REG.finditer(tok):
        if m.group(1): out.add((m.group(1), int(m.group(2))))
        else:
            for i in range(int(m.group(4)), int(m.group(5)) + 1): out.add((m.group(3), i))
    if re.search(r"\bm0\b", tok): out.add(("m", 0))
    if re.search(r"\bvcc\b", tok): out.add(("c", 0))
    return out
def parse(t):
    op, _, rest = t.partition(" ")
    ops = [x.strip() for x in rest.split(",")]
    return op, ops
def check_hazards(lines, name):
    hist = []
    pos = 0; errs = 0
    for t in lines:
        op, ops = parse(t)
        w = set(); r = set(); cr = set(); kind = "s"
        if op.startswith("v_mfma"):
            kind = "m"; w = regs_in(ops[0]); r = regs_in(ops[1]) | regs_in(ops[2]); cr = regs_in(ops[3])
        elif op.startswith("v_permlane"):
            kind = "p"; w = regs_in(ops[0]) | regs_in(ops[1]); r = set(w)
        elif op.startswith("v_"):
            kind = "e" if op.split("_")[1] in ("exp", "rcp", "log", "rsq", "sqrt") else "v"
            w = regs_in(ops[0]); r = set().union(*[regs_in(x) for x in ops[1:]]) if len(ops) > 1 else set()
        elif op.startswith("ds_read"):
            kind = "d"; w = regs_in(ops[0]); r = regs_in(ops[1])
        elif op.startswith("buffer_load") or op.startswith("global_load"):
            kind = "l"
            if t.rstrip().endswith("lds"): r = regs_in(rest_of(t)) | {("m", 0)}
            else: w = regs_in(ops[0]); r = set().union(*[regs_in(x) for x in ops[1:]])
        elif op.startswith("buffer_store"):
            kind = "st"; r = regs_in(rest_of(t))
        elif op.startswith("s_"):
            kind = "s"
            if op not in ("s_waitcnt", "s_barrier", "s_nop", "s_branch", "s_endpgm") and not op.startswith("s_cbranch") and not op.startswith("s_cmp"):
                w = regs_in(ops[0]); r = set().union(*[regs_in(x) for x in ops[1:]]) if len(ops) > 1 else set()
        def need(n, why, p):
            nonlocal errs
            if pos - p - 1 < n:
                errs += 1
                print("HAZARD[%s] %s: need %d have %d at '%s'" % (name, why, n, pos - p - 1, t))
        for (p, k, hw, hr, hc) in hist[-24:]:
            valu_now = kind in ("v", "e", "p")
            if k in ("v", "e", "p") and kind == "m" and hw & (r | cr): need(2, "valu->mfma", p)
            if k == "m":
                if kind == "m":
                    if hw & r: need(8, "mfma D->AB", p)
                    if hw & cr and hw != cr: need(6, "mfma D->C overlap", p)
                if valu_now and hw & (r | w): need(8, "mfma D->valu", p)
                if kind in ("d", "l", "st") and hw & (r | w): need(8, "mfma D->mem", p)
                if valu_now and hc & w: need(3, "mfma C WAR", p)
            if k == "e" and kind in ("v", "p", "m") and hw & (r | cr): need(1 if kind != "m" else 2, "trans->valu", p)
            if k in ("v", "e", "p") and kind == "p" and hw & r: need(2, "valu->permlane", p)
            if k in ("v", "e") and kind in ("l", "st") and {x for x in hw if x[0] == "s"} & r: need(5, "valu sgpr->vmem", p)
            if k in ("v", "e") and valu_now and {x for x in hw if x[0] in ("s", "c")} & r: need(2, "valu sgpr->valu", p)
            if k == "s" and kind == "l" and ("m", 0) in hw and ("m", 0) in r: need(1, "m0->dma", p)
            if k == "st" and valu_now and {x for x in hr if x[0] in "va"} & w: need(2, "store data WAR", p)
            if k in ("v", "e") and op.startswith("v_readfirstlane") and hw & r: need(1, "valu->readlane", p)
        hist.append((pos, kind, w, r, cr))
        pos += (int(ops[0]) + 1) if op == "s_nop" else 1
    return errs
def rest_of(t): return t.partition(" ")[2]

def tr(addr, off):
    return lambda r2: "ds_read_b64_tr_b16 %s, v%d offset:%d" % (ar(r2, 2), addr, off)
def trpair(addr, off0, off1):
    return [lambda r, o=off0: "ds_read_b64_tr_b16 %s, v%d offset:%d" % (ar(r, 2), addr, o),
            lambda r, o=off1: "ds_read_b64_tr_b16 %s, v%d offset:%d" % (ar(r + 2, 2), addr, o)]

class Gen:
    def __init__(self, role, opt):
        self.R = Role(role, opt); self.role = role; self.opt = opt
        self.kv = role == "kv"
    def dma_kv(self, gn, srd, soff_items, soff_reg, both):
        R = self.R
        tag = ("kv", gn)
        G = []
        pre = list(soff_items) + [SC(lambda: "s_add_u32 m0, %s, s%d" % (R.kvs(gn), sB1))]
        G.append((pre, [VM("buffer_load_dwordx4 v%d, %s, s%d offen offset:%d nt lds" % (vD + p, sr(srd), soff_reg, p * PITCH), tag) for p in range(4)]))
        if both:
            pre = [SC("s_add_u32 s%d, s%d, 2048" % (sT1, soff_reg)), SC(lambda: "s_add_u32 m0, %s, s%d" % (R.kvs(gn), sB2))]
            G.append((pre, [VM("buffer_load_dwordx4 v%d, %s, s%d offen offset:%d nt lds" % (vD + p, sr(srd), sT1, p * PITCH), tag) for p in range(4)]))
        return G
    def dma_wq(self, gi):
        R = self.R; tag = ("w", gi)
        G = []
        G.append(([SC(lambda: "s_add_u32 m0, %s, s%d" % (R.ws(gi), sXB))],
                  [VM("buffer_load_dwordx4 v%d, %s, s%d offen offset:%d lds" % (VX + p, sr(sX), sXO, p * 1024), tag) for p in range(4)]))
        G.append(([SC("s_add_u32 s%d, s%d, 64" % (sXO, sXO)), SC(lambda: "s_add_u32 m0, %s, s%d" % (R.ws(gi), sWB1))],
                  [VM("buffer_load_dwordx4 v%d, %s, s%d offen offset:%d lds" % (VWQ + p, sr(sWQ), sWQO, p * PITCH), tag) for p in range(4)]))
        G.append(([SC("s_add_u32 s%d, s%d, %d" % (sWQO, sWQO, 16 * 8192)), SC(lambda: "s_add_u32 m0, %s, s%d" % (R.ws(gi), sWB2))],
                  [VM("buffer_load_dwordx4 v%d, %s, s%d offen offset:%d lds" % (VWQ + p, sr(sWQ), sWQO, p * PITCH), tag) for p in range(4)]))
        G.append(([SC("s_add_u32 s%d, s%d, %d" % (sWQO, sWQO, 16 * 8192))], []))
        return G
    def dma_wo(self, gi, i):
        R = self.R; tag = ("w", gi)
        G = []
        G.append(([SC(lambda: "s_add_u32 m0, %s, s%d" % (R.ws(gi), sWB1))],
                  [VM("buffer_load_dwordx4 v%d, %s, s%d offen offset:%d lds" % (vWO + p, sr(sWO), sWOO, p * PITCH), tag) for p in range(4)]))
        G.append(([SC("s_add_u32 s%d, s%d, %d" % (sWOO, sWOO, 4 * 896)), SC(lambda: "s_add_u32 m0, %s, s%d" % (R.ws(gi), sWB2))],
                  [VM("buffer_load_dwordx4 v%d, %s, s%d offen offset:%d lds" % (vWO + p, sr(sWO), sWOO, p * PITCH), tag) for p in range(4)]))
        adv = (448 if i % 2 == 0 else 32 * 896 - 448) - 4 * 896
        G.append(([SC("s_add_u32 s%d, s%d, %d" % (sWOO, sWOO, adv) if adv >= 0 else "s_sub_u32 s%d, s%d, %d" % (sWOO, sWOO, -adv))], []))
        return G
    def touch(self, vreg, srd, pre, soff_reg, nt):
        return [(list(pre), [VM("buffer_load_dword v%d, v%d, %s, s%d offen%s" % (vDUM, vreg, sr(srd), soff_reg, " nt" if nt else ""))])]
    def spread(self, seg, G, g0, g1, par=None):
        nvm = sum(len(v) for _, v in G)
        cand = [g for g in range(g0, g1 + 1) if par is None or g % 2 == par]
        assert nvm <= len(cand), (seg.name, nvm, len(cand))
        k = 0; lastg = g0 - 1
        for pre, vms in G:
            if vms:
                g = cand[k * len(cand) // nvm]
                pg = g - 1
                if pg == lastg and k > 0:
                    for s in pre: seg.put(pg, It("spost", s.t))
                else:
                    seg.put(pg, *pre)
                for vm in vms:
                    g = cand[k * len(cand) // nvm]
                    seg.put(g, vm); k += 1; lastg = g
            else:
                seg.put(min(lastg + 1, len(seg.mf) - 1), *pre) if lastg + 1 <= len(seg.mf) - 1 else [seg.put(lastg, It("spost", s.t)) for s in pre]

    def qp_seg(self, h, j):
        R = self.R; gi = 30 * h + j; par = j & 1
        s = Seg("qp"); addr = vAW[par]
        s.bar = True; s.vmtags = [("w", gi)]; s.freebar = True
        s.setup = [V(lambda: "v_add_u32 v%d, %s, v%d" % (addr, R.ws(gi), vTR)), V(lambda: "v_add_u32 v%d, %s, v%d" % (vAX, R.ws(gi), vXA))]
        s.xreads = ["ds_read_b128 %s, v%d offset:%d" % (vr(XF(par, qb)), vAX, 1024 * qb) for qb in range(2)]
        for db in range(16):
            s.frags.append(trpair(addr, db * 32, db * 32 + 512))
            for qb in range(2):
                d = vr(QACC(db, qb))
                s.mf.append((db, "%s %s, {A}, %s, %s" % (MF, d, vr(XF(par, qb)), "0" if j == 0 else d)))
        if not self.kv:
            G = self.dma_wq(gi + 2) if j <= 11 else self.dma_wo(gi + 2, j - 12)
            self.spread(s, G, 1, 26)
        return s
    def kv_tile_static(self, h, n):
        if n < 16: return sK, n * 16384
        if n < 32:
            v = n - 16
            return sV, (v & 3) * 65536 + (v >> 2) * 128
        return sK, 262144 + (n - 32) * 16384
    def kv_issue_static(self, s, h, m, g0, g1, par=None, extra=()):
        G = []
        shared = self.opt.share and 1 <= m <= 17
        if self.kv or shared:
            srd, off = self.kv_tile_static(h, m + 4)
            G += self.dma_kv(32 * h + m + 4, srd, [SC("s_add_u32 s%d, s%d, %d" % (sT0, sHO, off))], sT0, not shared)
        if self.kv and self.opt.T:
            n = m + 4 + self.opt.T
            srd, off = self.kv_tile_static(h, n)
            G += self.touch(vT512 if srd == sV else vT128, srd, [SC("s_add_u32 s%d, s%d, %d" % (sT1, sHO, off))], sT1, True)
        G += list(extra)
        if G: self.spread(s, G, g0, g1, par)
    def softmax_ops(self, j, kb):
        par = j & 1
        regs = [S(par, kb, qb) + r for qb in range(2) for r in range(4)]
        ex = ["v_exp_f32 v%d, v%d" % (r, r) for r in regs]
        cv = []
        for qb in range(2):
            for hlf in range(2):
                b = S(par, kb, qb) + 2 * hlf
                cv.append("v_cvt_pk_bf16_f32 v%d, v%d, v%d" % (P(j, qb) + 2 * kb + hlf, b, b + 1))
        return ex, cv
    def max_ops(self, j):
        par = j & 1
        a = [S(par, 0, 0) + r for r in range(8)]; b = [S(par, 1, 0) + r for r in range(8)]
        m0 = ["v_max3_f32 v%d, v%d, v%d, v%d" % (vT0, a[0], a[1], a[2]),
              "v_max3_f32 v%d, v%d, v%d, v%d" % (vT0, vT0, a[3], a[4]),
              "v_max3_f32 v%d, v%d, v%d, v%d" % (vT0, vT0, a[5], a[6])]
        m1 = ["v_max3_f32 v%d, v%d, v%d, v%d" % (vT0, vT0, a[7], b[0]),
              "v_max3_f32 v%d, v%d, v%d, v%d" % (vT0, vT0, b[1], b[2]),
              "v_max3_f32 v%d, v%d, v%d, v%d" % (vT0, vT0, b[3], b[4]),
              "v_max3_f32 v%d, v%d, v%d, v%d" % (vT0, vT0, b[5], b[6]),
              "v_max_f32 v%d, v%d, v%d" % (vT0, vT0, b[7]),
              "v_cmp_lt_f32 vcc, s%d, v%d" % (sTHR, vT0)]
        return m0, m1
    def rare_branch(self, j):
        lab = "L_%s_rb%d" % (self.role, j)
        self.rare_sites.add(j)
        return [SC("s_cbranch_vccnz L_%s_rs%d" % (self.role, j)), It("lab", lab)]
    def qk_seg(self, h, m):
        R = self.R; gn = 32 * h + m; par = m & 1
        s = Seg("qk%d" % m); addr = vAKV[par]
        s.bar = True; s.vmtags = [("kv", gn)]; s.freebar = True
        s.setup = [V(lambda: "v_add_u32 v%d, %s, v%d" % (addr, R.kvs(gn), vKA))]
        for kb in range(2):
            for ks in range(8):
                s.frags.append([lambda r, o=kb * 512 + ks * 64: "ds_read_b128 %s, v%d offset:%d" % (ar(r), addr, o)])
                for qb in range(2):
                    d = vr(S(par, kb, qb))
                    c = d if ks else ("0" if m == 0 else vr(NEGM(qb)))
                    s.mf.append((kb * 8 + ks, "%s %s, {A}, %s, %s" % (MF, d, vr(Q(ks, qb)), c)))
        if m >= 2:
            ex, cv = self.softmax_ops(m - 2, 1)
            for i in range(1, 8): s.put(2 * i - 1, E(ex[i]))
            for i in range(4): s.put(4 * i + 2, V(cv[i]))
        if m == 1:
            q = []
            for kb in range(2):
                for qb in range(2):
                    for r in range(4):
                        q.append(V("v_add_f32 v%d, v%d, v%d" % (S(0, kb, qb) + r, S(0, kb, qb) + r, NEGM(qb)), lo=0 if kb == 0 else 3, hi=10))
            m0, m1 = self.max_ops(0)
            q += [V(t, hi=14) for t in m0 + m1]
            s.vq = q
        if m >= 1:
            if m >= 2:
                m0, m1 = self.max_ops(m - 1)
                for t, g in zip(m1, (4, 4, 8, 8, 12, 12)): s.put(g, V(t))
            for it in self.rare_branch(m - 1): s.put(15, it)
            ex, cv = self.softmax_ops(m - 1, 0)
            for i in range(8): s.put(15 + 2 * i, E(ex[i]))
            for i in range(4): s.put(18 + 4 * i, V(cv[i]))
            ex, cv = self.softmax_ops(m - 1, 1)
            s.put(31, E(ex[0]))
            m0, m1 = self.max_ops(m)
            for t, g in zip(m0, (20, 24, 28)): s.put(g, V(t))
        if m == 0:
            q = []
            t = [vT0, vT1]; u = [vT2, vT3]
            for qb in range(2):
                b = S(0, 0, qb); q.append(V("v_max3_f32 v%d, v%d, v%d, v%d" % (t[qb], b, b + 1, b + 2), lo=19))
            for qb in range(2): q.append(V("v_max_f32 v%d, v%d, v%d" % (t[qb], t[qb], S(0, 0, qb) + 3)))
            for sw in ("32", "16"):
                for qb in range(2): q.append(V("v_mov_b32 v%d, v%d" % (u[qb], t[qb])))
                q.append(V("v_nop"))
                for qb in range(2): q.append(V("v_permlane%s_swap_b32 v%d, v%d" % (sw, t[qb], u[qb])))
                for qb in range(2): q.append(V("v_max_f32 v%d, v%d, v%d" % (t[qb], t[qb], u[qb])))
            for qb in range(2):
                for r in range(4): q.append(V("v_sub_f32 v%d, 0, v%d" % (NEGM(qb) + r, t[qb]), hi=30))
            s.vq = q
            s.sq = [SC("s_cmp_eq_u32 s%d, 1" % sHEAD), SC("s_cselect_b32 s%d, 0, s%d" % (sWQ + 2, sWQ + 2)), SC("s_cselect_b32 s%d, 0, s%d" % (sX + 2, sX + 2)),
                    SC("s_mov_b32 s%d, 512" % sWQO), SC("s_mov_b32 s%d, 0" % sXO)]
        if m == 11:
            for p in range(4): s.put(16 + 4 * p if p else 16, V("v_add_u32 v%d, v%d, v%d" % (vD + p, vD + p, vDELTA)))
        if m >= 1:
            extra = []
            if self.kv and self.opt.wtouch and m <= 14:
                extra = self.touch(vT128, sWO, [], sWOO, False) + [([SC("s_add_u32 s%d, s%d, 16384" % (sWOO, sWOO))], [])]
            self.kv_issue_static(s, h, m, 2, 14 if m == 11 else 28, par=0, extra=extra)
        return s
    def pv_seg(self, h, c, t, bar, vmtags):
        R = self.R; n = 16 + 4 * c + t; gn = 32 * h + n; par = n & 1
        s = Seg("pv"); addr = vAKV[par]
        s.bar = bar; s.vmtags = vmtags; s.freebar = bar
        s.setup = [V(lambda: "v_add_u32 v%d, %s, v%d" % (addr, R.kvs(gn), vTR))]
        for k in range(4):
            j = 4 * t + k
            if c == 0:
                for qb in range(2):
                    d = vr(LL(qb))
                    s.mf.append((None, "%s %s, %s, %s, %s" % (MF, d, vr(ONES), vr(P(j, qb)), "0" if j == 0 else d)))
            for db in range(4):
                s.frags.append(trpair(addr, 2 * k * 128 + db * 32, (2 * k + 1) * 128 + db * 32))
                for qb in range(2):
                    d = vr(OACC(db, qb))
                    s.mf.append((4 * k + db, "%s %s, {A}, %s, %s" % (MF, d, vr(P(j, qb)), "0" if j == 0 else d)))
        return s
    def op_seg(self, h, i, bar, vmtags):
        R = self.R; gi = 30 * h + 14 + i; par = i & 1; u = (i >> 1) & 1; half = i & 1
        s = Seg("op"); addr = vAW[par]
        s.bar = bar; s.vmtags = vmtags; s.freebar = bar
        s.setup = [V(lambda: "v_add_u32 v%d, %s, v%d" % (addr, R.ws(gi), vTR))]
        for nb in range(14):
            s.frags.append(trpair(addr, nb * 32, nb * 32 + 512))
            for qb in range(2):
                d = ar(OUT(half, nb, qb))
                s.mf.append((nb, "%s %s, {A}, %s, %s" % (MF, d, vr(OBF(u, qb)), d)))
        return s
    def norm_ops(self, u):
        q = []
        for o in range(2):
            for qb in range(2):
                b = OACC(2 * u + o, qb)
                for r in range(4): q.append("v_mul_f32 v%d, v%d, v%d" % (b + r, b + r, RL(qb)))
                for hlf in range(2): q.append("v_cvt_pk_bf16_f32 v%d, v%d, v%d" % (OBF(u, qb) + 2 * o + hlf, b + 2 * hlf, b + 2 * hlf + 1))
        return q
    def stamp(self, k):
        if not self.opt.stamps: return
        R = self.R
        lab = "L_%s_st%d" % (self.role, k)
        R.raw(SC("s_memrealtime s[%d:%d]" % (sST + 28, sST + 29)), SC("s_waitcnt lgkmcnt(0)"),
              SC("s_cmp_eq_u32 s%d, 0" % sHEAD),
              SC("s_cselect_b32 s%d, s%d, s%d" % (sST + k, sST + 28, sST + k)),
              SC("s_cselect_b32 s%d, s%d, s%d" % (sST + 8 + k, sST + 8 + k, sST + 28)))

    def dump_regs(self, base, n, label):
        R = self.R
        R.raw(SC("s_nop 15"), SC("s_waitcnt vmcnt(0) lgkmcnt(0)"))
        R.raw(V("v_mbcnt_lo_u32_b32 v%d, -1, 0" % vT2), V("v_mbcnt_hi_u32_b32 v%d, -1, v%d" % (vT2, vT2)), V("v_lshlrev_b32 v%d, 4, v%d" % (vT2, vT2)))
        R.raw(SC("s_lshl_b32 s%d, s%d, 15" % (sT0, sWAVE)))
        for i in range(n // 4):
            R.raw(VM("buffer_store_dwordx4 %s, v%d, %s, s%d offen" % (vr(base + 4 * i), vT2, sr(sO), sT0)), SC("s_add_u32 s%d, s%d, 1024" % (sT0, sT0)))
        R.raw(SC("s_waitcnt vmcnt(0)"), SC("s_endpgm"))

    def build(self):
        R = self.R; opt = self.opt; kv = self.kv; role = self.role
        self.rare_sites = set()
        R.begin("pro")
        R.raw(It("lab", "L_%s_start" % role))
        if kv:
            R.raw(SC("s_lshl_b32 s%d, s%d, 6" % (sT0, sWAVE)),
                  V("v_add_u32 v2, s%d, v1" % sT0),
                  V("v_lshlrev_b32 v%d, 7, v2" % vT128), V("v_lshlrev_b32 v%d, 9, v2" % vT512),
                  V("v_lshrrev_b32 v3, 2, v2"), V("v_lshlrev_b32 v3, 13, v3"), V("v_and_b32 v4, 3, v1"),
                  V("v_lshl_add_u32 v%d, v4, 7, v3" % vTWQ))
            R.raw(SC("s_getpc_b64 s[%d:%d]" % (sRET, sRET + 1)), It("lab", "L_pc"),
                  SC("s_sub_u32 s%d, s%d, L_pc-main_kernel" % (sRET, sRET)), SC("s_subb_u32 s%d, s%d, 0" % (sRET + 1, sRET + 1)),
                  V("v_mov_b32 v5, v%d" % vT128))
            for i in range(5):
                R.raw(V("v_min_u32 v6, L_code_end-main_kernel-4, v5"), VM("global_load_dword v%d, v6, s[%d:%d]" % (vDUM, sRET, sRET + 1)), V("v_add_u32 v5, 16384, v5"))
            if opt.wtouch:
                for i in range(7): R.raw(SC("s_mov_b32 s%d, %d" % (sT0, i * 16384)), VM("buffer_load_dword v%d, v%d, %s, s%d offen" % (vDUM, vT128, sr(sX), sT0)))
                for j in range(2, 14): R.raw(SC("s_mov_b32 s%d, %d" % (sT0, j * 32 * 8192)), VM("buffer_load_dword v%d, v%d, %s, s%d offen" % (vDUM, vTWQ, sr(sWQ), sT0)))
            for n in range(5):
                if n == 4: R.raw(SC("s_waitcnt vmcnt(40)"))
                for pre, vms in self.dma_kv(n, sK, [SC("s_mov_b32 s%d, %d" % (sT0, n * 16384))], sT0, True):
                    R.raw(*pre); R.raw(SC("s_nop 0")); R.raw(*vms)
            for n in range(5, 5 + opt.T):
                R.raw(SC("s_mov_b32 s%d, %d" % (sT0, n * 16384)), VM("buffer_load_dword v%d, v%d, %s, s%d offen nt" % (vDUM, vT128, sr(sK), sT0)))
        else:
            R.raw(SC("s_sub_u32 s%d, s%d, 2" % (sT0, sWAVE)),
                  SC("s_mul_i32 s%d, s%d, %d" % (sWB1, sT0, 4 * PITCH)), SC("s_add_u32 s%d, s%d, %d" % (sWB2, sWB1, 8 * PITCH)),
                  SC("s_lshl_b32 s%d, s%d, 12" % (sXB, sT0)), SC("s_add_u32 s%d, s%d, %d" % (sXB, sXB, SLOT)),
                  V("v_lshrrev_b32 v2, 5, v1"), V("v_and_b32 v3, 31, v1"), V("v_lshlrev_b32 v4, 4, v3"),
                  V("v_lshl_add_u32 v4, v2, 15, v4"), SC("s_lshl_b32 s%d, s%d, 16" % (sT1, sT0)), V("v_add_u32 v%d, s%d, v4" % (vWQ0, sT1)),
                  V("v_and_b32 v4, 15, v1"), V("v_mul_u32_u24 v4, 896, v4"), V("v_lshrrev_b32 v5, 4, v1"), V("v_lshl_add_u32 v4, v5, 4, v4"),
                  SC("s_mul_i32 s%d, s%d, %d" % (sT1, sT0, 64 * 896)), V("v_add_u32 v%d, s%d, v4" % (vX0, sT1)))
            R.raw(*self.wq_patterns())
            for gi in range(2):
                for pre, vms in self.dma_wq(gi):
                    R.raw(*pre)
                    if vms: R.raw(SC("s_nop 0")); R.raw(*vms)
            R.raw(V("v_min_u32 v3, 27, v3"), V("v_lshlrev_b32 v3, 4, v3"), V("v_mul_u32_u24 v2, %d, v2" % (16 * 896)), V("v_add_u32 v3, v2, v3"),
                  SC("s_mul_i32 s%d, s%d, %d" % (sT1, sT0, 8 * 896)), V("v_add_u32 v3, s%d, v3" % sT1))
            for p in range(4): R.raw(V("v_add_u32 v%d, %d, v3" % (vWO + p, 480 - 160 * p)))
            R.raw(SC("s_sub_u32 s%d, s%d, 480" % (sWO, sWO)), SC("s_subb_u32 s%d, s%d, 0" % (sWO + 1, sWO + 1)), SC("s_add_u32 s%d, s%d, 480" % (sWO + 2, sWO + 2)))
        for i in range(224): R.raw(V("v_accvgpr_write_b32 a%d, 0" % i))
        R.prime(self.qp_seg(0, 0))

        for h in range(2):
            R.begin("qp01"); R.raw(It("lab", "L_%s_head" % role)); self.stamp(0)
            R.raw(SC("s_mov_b32 s%d, 0" % sLC))
            R.seg(self.qp_seg(h, 0), self.qp_seg(h, 1))
            R.seg(self.qp_seg(h, 1), self.qp_seg(h, 2))
            for it in range(5):
                R.begin("qploop"); R.raw(It("lab", "L_%s_qploop" % role))
                j = 2 + 2 * it
                R.seg(self.qp_seg(h, j), self.qp_seg(h, j + 1))
                s = self.qp_seg(h, j + 1)
                rot = R.rot_w(2)
                for k, x in enumerate(rot): s.put(28 + k, x)
                s.put(27, SC("s_add_u32 s%d, s%d, 1" % (sLC, sLC)))
                s.put(31, It("spost", "s_cmp_lt_u32 s%d, 5" % sLC), It("spost", "s_cbranch_scc1 L_%s_qploop" % role))
                R.seg(s, self.qp_seg(h, j + 2))
            R.begin("qpend")
            R.seg(self.qp_seg(h, 12), self.qp_seg(h, 13))
            R.seg(self.qp_seg(h, 13), self.qk_seg(h, 0))
            self.stamp(1)
            for ks in range(8):
                if ks == 7 or True:
                    pass
                for qb in range(2):
                    for o in range(2):
                        b = QACC(2 * ks + o, qb)
                        for r in range(4): R.raw(V("v_mul_f32 v%d, s%d, v%d" % (b + r, sC, b + r)))
                for qb in range(2):
                    for o in range(2):
                        b = QACC(2 * ks + o, qb)
                        for hlf in range(2): R.raw(V("v_cvt_pk_bf16_f32 v%d, v%d, v%d" % (Q(ks, qb) + 2 * o + hlf, b + 2 * hlf, b + 2 * hlf + 1)))
                R.raw(V("v_permlane32_swap_b32 v%d, v%d" % (Q(ks, 0), Q(ks, 0) + 2)), V("v_permlane32_swap_b32 v%d, v%d" % (Q(ks, 0) + 1, Q(ks, 0) + 3)),
                      V("v_permlane32_swap_b32 v%d, v%d" % (Q(ks, 1), Q(ks, 1) + 2)), V("v_permlane32_swap_b32 v%d, v%d" % (Q(ks, 1) + 1, Q(ks, 1) + 3)))
            if opt.dump == "q": self.dump_regs(128, 64, "q"); return
            self.stamp(2)
            R.begin("qk")
            for m in range(16):
                nxt = self.qk_seg(h, m + 1) if m < 15 else self.pv_seg(h, 0, 0, True, [("kv", 32 * h + 16)])
                R.seg(self.qk_seg(h, m), nxt)
            ex, cv = self.softmax_ops(14, 1)
            R.raw(E(ex[1]), E(ex[2]), V(cv[0]), E(ex[3]), E(ex[4]), V(cv[1]), E(ex[5]), E(ex[6]), V(cv[2]), E(ex[7]))
            m0, m1 = self.max_ops(15)
            R.raw(V(m1[0]), V(cv[3]))
            R.raw(*[V(t) for t in m1[1:]])
            for r in range(4): R.raw(V("v_mov_b32 v%d, 0x3f803f80" % (ONES + r)))
            R.raw(*self.rare_branch(15))
            R.raw(SC("s_nop 0"))
            self.stamp(3)
            R.begin("pv0")
            for t in range(4):
                s = self.pv_seg(h, 0, t, True, None)
                if t < 2:
                    ex, cv = self.softmax_ops(15, t)
                    s.vq = [E(ex[0]), E(ex[1]), E(ex[2]), V(cv[0]), E(ex[3]), E(ex[4]), V(cv[1]), E(ex[5]), E(ex[6]), V(cv[2]), E(ex[7]), V("v_nop"), V(cv[3])]
                if t == 2 and not kv:
                    s.vq = self.wq_patterns() + [V("v_sub_u32 v%d, v%d, v%d" % (vD + p, vD + p, vDELTA)) for p in range(4)]
                if t == 3:
                    s.vq = [E("v_rcp_f32 v%d, v%d" % (RL(qb), LL(qb)), lo=36) for qb in range(2)]
                    if kv:
                        s.sq = [SC("s_mov_b32 s%d, s%d" % (sCD + k, sV + k)) for k in range(2)] + [SC("s_mov_b32 s%d, s%d" % (sCT + k, sV + k)) for k in range(2)]
                        s.sq += [SC("s_add_u32 s%d, s%d, 256" % (sDO, sHO)), SC("s_mov_b32 s%d, 65536" % sDS),
                                 SC("s_add_u32 s%d, s%d, 384" % (sTO, sHO)), SC("s_mov_b32 s%d, 65536" % sTS)]
                        s.vq = [V("v_mov_b32 v%d, v%d" % (vTCUR, vT512))] + s.vq
                    s.sq += [SC("s_mov_b32 s%d, 1" % sLC)]
                extra = []
                if kv and opt.wtouch and t >= 2:
                    extra = self.touch(vTWQ, sWQ, [], sWQO, False) + [([SC("s_add_u32 s%d, s%d, %d" % (sWQO, sWQO, 32 * 8192))], [])]
                self.kv_issue_static(s, h, 16 + t, 1, 34, extra=extra)
                nxt = self.pv_seg(h, 0, t + 1, True, [("kv", 32 * h + 17 + t)]) if t < 3 else self.op_seg(h, 0, True, [("kv", 32 * h + 20), ("w", 30 * h + 14)])
                R.seg(s, nxt)
            if opt.dump == "p": self.dump_regs(0, 128, "p"); return
            R.raw(*[V(t) for t in self.norm_ops(0)]); R.raw(SC("s_nop 1"))
            self.stamp(4)
            for c in range(1, 4):
                R.begin("vloop"); R.raw(It("lab", "L_%s_vloop" % role))
                seq = []
                for t in range(4):
                    i = 4 * (c - 1) + t
                    tags = [("kv", 32 * h + 16 + 4 * c + t), ("w", 30 * h + 14 + i)]
                    if t == 0: a_, b_ = self.op_seg(h, i, True, tags), self.pv_seg(h, c, t, False, None)
                    else: a_, b_ = self.pv_seg(h, c, t, True, tags), self.op_seg(h, i, False, None)
                    pv = b_ if t == 0 else a_
                    if t == 0: a_.vq = [V(x) for x in self.norm_ops(1)]
                    if t == 3: b_.vq = [V(x, lo=1, hi=26) for x in self.norm_ops(0)]
                    if kv:
                        gn = 32 * h + 20 + 4 * c + t
                        G = self.dma_kv(gn, sCD, [], sDO, True) + [([SC("s_add_u32 s%d, s%d, s%d" % (sDO, sDO, sDS))], [])]
                        if opt.T:
                            G += self.touch(vTCUR, sCT, [], sTO, True) + [([SC("s_add_u32 s%d, s%d, s%d" % (sTO, sTO, sTS))], [])]
                        if opt.wtouch:
                            G += self.touch(vTWQ, sWQ, [], sWQO, False) + [([SC("s_add_u32 s%d, s%d, %d" % (sWQO, sWQO, 32 * 8192))], [])]
                            G += self.touch(vT128, sX, [], sXO, False) + [([SC("s_add_u32 s%d, s%d, 16384" % (sXO, sXO))], [])]
                        self.spread(pv, G, 1, 30)
                    else:
                        self.spread(a_, self.dma_wo(30 * h + 14 + i + 2, i + 2), 1, 24)
                    seq += [a_, b_]
                last = seq[-1]
                nx = self.op_seg(h, 4 * c, True, [("kv", 32 * h + 20 + 4 * c), ("w", 30 * h + 14 + 4 * c)] if c < 3 else [("w", 30 * h + 14 + 12)])
                for k in range(len(seq)):
                    s = seq[k]
                    if k == len(seq) - 1:
                        rot = R.rot_kv(4) + R.rot_w(4)
                        for q_, x in enumerate(rot): s.put(17 + q_, x)
                        s.put(16, SC("s_add_u32 s%d, s%d, 1" % (sLC, sLC)))
                        if kv:
                            s.put(27, It("spost", "s_cmp_lt_u32 s%d, 4" % sLC), It("spost", "s_cbranch_scc1 L_kv_vnext"))
                        else:
                            s.put(27, It("spost", "s_cmp_lt_u32 s%d, 4" % sLC), It("spost", "s_cbranch_scc1 L_w_vloop"))
                    R.seg(s, seq[k + 1] if k + 1 < len(seq) else nx)
            self.stamp_blk = True
            R.begin("opend"); self.stamp(5)
            for i in range(12, 16):
                s = self.op_seg(h, i, True, None)
                if i == 12:
                    s.vq = [V(x) for x in self.norm_ops(1)]
                if i == 13 and kv:
                    self.kv_issue_static(s, h, 32, 1, 24)
                if not kv:
                    G = self.dma_wo(30 * h + 14 + i + 2, i + 2) if i < 14 else self.dma_wq(30 * h + 14 + i + 2)
                    self.spread(s, G, 1, 24 if i != 15 else 20)
                if i == 15:
                    rot = R.rot_w(2)
                    for q_, x in enumerate(rot): s.put(23 + q_, x)
                    s.put(22, SC("s_add_u32 s%d, s%d, 1" % (sHEAD, sHEAD)))
                    s.put(21, SC("s_add_u32 s%d, s%d, 262144" % (sHO, sHO)))
                    s.put(27, It("spost", "s_cmp_lt_u32 s%d, 2" % sHEAD), It("spost", "s_cbranch_scc1 L_%s_head" % role))
                nxt = self.op_seg(h, i + 1, True, [("w", 30 * h + 14 + i + 1)]) if i < 15 else self.qp_seg(h + 1, 0)
                R.seg(s, nxt)
        R.begin("fin")
        R.raw(SC("s_branch L_fin"))
        if kv:
            R.begin("vnext")
            R.raw(It("lab", "L_kv_vnext"),
                  SC("s_cmp_eq_u32 s%d, 2" % sLC), SC("s_cbranch_scc0 L_kv_vnext3"),
                  SC("s_add_u32 s%d, s%d, 384" % (sDO, sHO)),
                  SC("s_mov_b32 s%d, s%d" % (sCT, sK)), SC("s_mov_b32 s%d, s%d" % (sCT + 1, sK + 1)),
                  SC("s_add_u32 s%d, s%d, 262144" % (sTO, sHO)), SC("s_mov_b32 s%d, 16384" % sTS), V("v_mov_b32 v%d, v%d" % (vTCUR, vT128)),
                  SC("s_branch L_kv_vloop"),
                  It("lab", "L_kv_vnext3"),
                  SC("s_mov_b32 s%d, s%d" % (sCD, sK)), SC("s_mov_b32 s%d, s%d" % (sCD + 1, sK + 1)),
                  SC("s_add_u32 s%d, s%d, 262144" % (sDO, sHO)), SC("s_mov_b32 s%d, 16384" % sDS))
            for p in range(4): R.raw(V("v_sub_u32 v%d, v%d, v%d" % (vD + p, vD + p, vDELTA)))
            R.raw(SC("s_branch L_kv_vloop"))
        R.begin("rare")
        for j in sorted(self.rare_sites):
            R.raw(It("lab", "L_%s_rs%d" % (role, j)), SC("s_call_b64 s[%d:%d], L_rare%d" % (sRET, sRET + 1, j & 1)), SC("s_branch L_%s_rb%d" % (role, j)))
    def wq_patterns(self):
        return [V("v_add_u32 v%d, %d, v%d" % (VWQ + p, p * (8192 - PITCH), vWQ0)) for p in range(4)] + \
               [V("v_add_u32 v%d, %d, v%d" % (VX + p, p * (16 * 896 - 1024), vX0)) for p in range(4)]

ORDER["spost"] = 9
ORDER["lab"] = 3

def rare_sub(a, par):
    a.label("L_rare%d" % par)
    a("s_nop 7")
    t = [vT0, vT1]; u = [vT2, vT3]
    for qb in range(2):
        r = [S(par, kb, qb) + i for kb in range(2) for i in range(4)]
        a("v_max3_f32 v%d, v%d, v%d, v%d" % (t[qb], r[0], r[1], r[2]))
        a("v_max3_f32 v%d, v%d, v%d, v%d" % (t[qb], t[qb], r[3], r[4]))
        a("v_max3_f32 v%d, v%d, v%d, v%d" % (t[qb], t[qb], r[5], r[6]))
        a("v_max_f32 v%d, v%d, v%d" % (t[qb], t[qb], r[7]))
    for sw in ("32", "16"):
        for qb in range(2): a("v_mov_b32 v%d, v%d" % (u[qb], t[qb]))
        a("s_nop 1")
        for qb in range(2): a("v_permlane%s_swap_b32 v%d, v%d" % (sw, t[qb], u[qb]))
        for qb in range(2): a("v_max_f32 v%d, v%d, v%d" % (t[qb], t[qb], u[qb]))
    for qb in range(2):
        a("v_ceil_f32 v%d, v%d" % (t[qb], t[qb]))
        a("v_max_f32 v%d, 0, v%d" % (t[qb], t[qb]))
        for r in range(4): a("v_sub_f32 v%d, v%d, v%d" % (NEGM(qb) + r, NEGM(qb) + r, t[qb]))
        for kb in range(2):
            for r in range(4): a("v_sub_f32 v%d, v%d, v%d" % (S(par, kb, qb) + r, S(par, kb, qb) + r, t[qb]))
        for r in range(4): a("v_sub_f32 v%d, v%d, v%d" % (S(1 - par, 0, qb) + r, S(1 - par, 0, qb) + r, t[qb]))
        a("v_min_f32 v%d, 0x437f0000, v%d" % (u[qb], t[qb]))
        a("v_cvt_u32_f32 v%d, v%d" % (u[qb], u[qb]))
        a("v_mul_u32_u24 v%d, 0x800080, v%d" % (u[qb], u[qb]))
        for j in range(16):
            for r in range(4): a("v_pk_sub_u16 v%d, v%d, v%d clamp" % (P(j, qb) + r, P(j, qb) + r, u[qb]))
    a("s_nop 1")
    a("s_setpc_b64 s[%d:%d]" % (sRET, sRET + 1))

def srd_build(a, d, base, off_lo, nbytes):
    a("s_add_u32 s%d, s%d, s%d" % (d, base, off_lo))
    a("s_addc_u32 s%d, s%d, 0" % (d + 1, base + 1))
    a("s_mov_b32 s%d, 0x%x" % (d + 2, nbytes))
    a("s_mov_b32 s%d, 0x00020000" % (d + 3))

HEADER = """; Fused MHA block: out = softmax((x Wq) K^T / 16) V Wo   (B=32, Sq=128, D=448, H=16, Sk=512, Dh=256)
; main_kernel: one workgroup per (batch, head pair); writes bf16 partial out-projections to d_ws
"""

def generate(opt, fn):
    a = Asm()
    for l in HEADER.strip().split("\n"): a.lines.append(l)
    a.lines.append("; @launch kernel=main_kernel grid=(256,1,1) block=(256,1,1) lds=%d" % LDS_BYTES)
    if not opt.dump:
        a.lines.append("; @launch kernel=red_kernel grid=(448,1,1) block=(256,1,1) lds=0")
    a('.amdgcn_target "amdgcn-amd-amdhsa--gfx950"')
    kernel_begin(a, "main_kernel")
    a("s_cmp_ge_u32 s2, 256")
    a("s_cbranch_scc1 L_exit")
    a("s_load_dwordx8 s[72:79], s[0:1], 0")
    a("s_load_dwordx2 s[80:81], s[0:1], 32")
    a("s_load_dwordx2 s[82:83], s[0:1], 56")
    a("v_lshrrev_b32 v2, 6, v0")
    a("v_and_b32 v1, 63, v0")
    a("v_readfirstlane_b32 s%d, v2" % sWAVE)
    a("s_and_b32 s84, s2, 3")
    a("s_lshl_b32 s84, s84, 1")
    a("s_bfe_u32 s85, s2, 0x10003")
    a("s_add_u32 s84, s84, s85")
    a("s_bfe_u32 s85, s2, 0x10002")
    a("s_lshl_b32 s85, s85, 4")
    a("s_lshr_b32 s86, s2, 4")
    a("s_add_u32 s85, s85, s86")
    a("s_lshl_b32 s86, s85, 3")
    a("s_add_u32 s86, s86, s84")
    a("s_lshl_b32 s87, s86, 19")
    a("s_lshl_b32 s88, s84, 10")
    a("s_mul_i32 s89, s84, %d" % (2 * 229376))
    a("s_mul_i32 s90, s85, 114688")
    if opt.dump: a("s_lshl_b32 s91, s86, 17")
    else: a("s_mul_i32 s91, s86, 114688")
    a("v_and_b32 v3, 15, v1")
    a("v_mul_u32_u24 v3, %d, v3" % PITCH)
    a("v_lshrrev_b32 v4, 4, v1")
    a("v_lshl_add_u32 v%d, v4, 4, v3" % vKA)
    a("v_lshrrev_b32 v3, 2, v1")
    a("v_mul_u32_u24 v3, %d, v3" % PITCH)
    a("v_and_b32 v4, 1, v1")
    a("v_lshl_add_u32 v3, v4, 4, v3")
    a("v_bfe_u32 v4, v1, 1, 1")
    a("v_lshl_add_u32 v%d, v4, 3, v3" % vTR)
    a("s_lshl_b32 s92, s%d, 11" % sWAVE)
    a("s_add_u32 s92, s92, %d" % SLOT)
    a("v_lshlrev_b32 v5, 4, v1")
    a("v_add_u32 v%d, s92, v5" % vXA)
    a("s_lshl_b32 s92, s%d, 10" % sWAVE)
    a("v_add_u32 v3, s92, v5")
    for p in range(4): a("v_add_u32 v%d, %d, v3" % (vD + p, p * (4096 - PITCH)))
    a("v_lshrrev_b32 v3, 4, v1")
    a("v_lshlrev_b32 v3, 14, v3")
    a("v_bfe_u32 v4, v1, 3, 1")
    a("v_lshl_add_u32 v3, v4, 9, v3")
    a("v_and_b32 v4, 7, v1")
    a("v_lshl_add_u32 v3, v4, 4, v3")
    a("v_sub_u32 v%d, v3, v5" % vDELTA)
    for i in range(NKV): a("s_mov_b32 s%d, %d" % (sKVS + i, i * SLOT))
    for i in range(3): a("s_mov_b32 s%d, %d" % (sWS + i, WBASE + i * WSLOT))
    a("s_mul_i32 s%d, s%d, %d" % (sB1, sWAVE, 4 * PITCH))
    a("s_add_u32 s%d, s%d, %d" % (sB2, sB1, 8 * PITCH))
    for r in (sHO, sHEAD, sWQO, sXO, sWOO): a("s_mov_b32 s%d, 0" % r)
    a("s_mov_b32 s%d, 0x3db8aa3b" % sC)
    import struct
    a("s_mov_b32 s%d, 0x%x" % (sTHR, struct.unpack("<I", struct.pack("<f", opt.thr))[0]))
    a("s_waitcnt lgkmcnt(0)")
    srd_build(a, sX, 72, 90, 114688)
    srd_build(a, sWQ, 78, 88, 0)
    a("s_sub_u32 s%d, %d, s88" % (sWQ + 2, 448 * 8192))
    srd_build(a, sK, 74, 87, 524288)
    srd_build(a, sV, 76, 87, 524288)
    srd_build(a, sWO, 80, 89, 2 * 229376)
    srd_build(a, sO, 82, 91, 131072 if opt.dump else 114688)
    for k in range(4):
        a("s_mov_b32 s%d, s%d" % (sCD + k, sV + k) if k < 3 else "s_mov_b32 s%d, 0x00020000" % (sCD + 3))
        a("s_mov_b32 s%d, s%d" % (sCT + k, sV + k) if k < 3 else "s_mov_b32 s%d, 0x00020000" % (sCT + 3))
    if opt.stamps:
        a("s_mov_b32 s98, s82"); a("s_mov_b32 s99, s83")
        a("s_memrealtime s[%d:%d]" % (sST + 28, sST + 29)); a("s_waitcnt lgkmcnt(0)"); a("s_mov_b32 s%d, s%d" % (sST + 7, sST + 28))
    a("s_cmp_lt_u32 s%d, 2" % sWAVE)
    a("s_cbranch_scc1 L_kv_start")
    errs = 0
    for role in ("w", "kv"):
        g = Gen(role, opt); g.build(); g.R.resolve(); g.R.emit(a)
        lines = []
        for (blk, idx, it, t) in g.R.trace:
            t = g.R.text_of(blk, idx, it.k, t)
            if t is not None and it.k != "lab": lines.append(t)
        errs += check_hazards(lines, role)
        tot = {"qploop": 5, "vloop": 3}
        est = sum(c * tot.get(b, 1) for b, c in g.R.cost.items() if b not in ("pro", "fin", "rare", "vnext"))
        print("role %s: est cycles per head %d  %s" % (role, est, g.R.cost))
    if not opt.dump:
        rare_sub(a, 0); rare_sub(a, 1)
    else:
        rare_sub(a, 0); rare_sub(a, 1)
    a.label("L_fin")
    if opt.stamps:
        a("s_memrealtime s[%d:%d]" % (sST + 28, sST + 29)); a("s_waitcnt lgkmcnt(0)"); a("s_mov_b32 s%d, s%d" % (sST + 6, sST + 28))
    a("v_mbcnt_lo_u32_b32 v%d, -1, 0" % vT2)
    a("v_mbcnt_hi_u32_b32 v%d, -1, v%d" % (vT2, vT2))
    a("v_lshlrev_b32 v%d, 4, v%d" % (vT2, vT2))
    a("s_mul_i32 s%d, s%d, %d" % (sT0, sWAVE, 28 * 1024))
    a("s_nop 3")
    k = 0
    for half in range(2):
        for pr in range(7):
            for qb in range(2):
                tb = 16 * (k % 8); k += 1
                for o in range(2):
                    for r in range(4): a("v_accvgpr_read_b32 v%d, a%d" % (tb + 4 * o + r, OUT(half, 2 * pr + o, qb) + r))
                for i in range(4): a("v_cvt_pk_bf16_f32 v%d, v%d, v%d" % (tb + 8 + i, tb + 2 * i, tb + 2 * i + 1))
                ci = qb * 14 + half * 7 + pr
                a("s_add_u32 s%d, s%d, %d" % (sT1, sT0, ci * 1024))
                a("buffer_store_dwordx4 %s, v%d, %s, s%d offen" % (vr(tb + 8), vT2, sr(sO), sT1))
    if opt.stamps:
        a("s_waitcnt vmcnt(0)")
        a("s_memrealtime s[%d:%d]" % (sST + 28, sST + 29)); a("s_waitcnt lgkmcnt(0)"); a("s_mov_b32 s%d, s%d" % (sST + 14, sST + 28))
        a("s_add_u32 s%d, s98, 0x4000000" % sO); a("s_addc_u32 s%d, s99, 0" % (sO + 1)); a("s_mov_b32 s%d, 0x100000" % (sO + 2))
        a("s_lshl_b32 s%d, s2, 8" % sT0); a("s_lshl_b32 s%d, s%d, 6" % (sT1, sWAVE)); a("s_add_u32 s%d, s%d, s%d" % (sT0, sT0, sT1))
        for i in range(16): a("v_mov_b32 v%d, s%d" % (i, sST + i))
        a("v_mov_b32 v16, 0")
        for i in range(4): a("buffer_store_dwordx4 %s, v16, %s, s%d offen offset:%d" % (vr(4 * i), sr(sO), sT0, 16 * i))
    a.label("L_exit")
    a("s_endpgm")
    a.label("L_code_end")
    kernel_begin(a, "red_kernel")
    a("s_cmp_ge_u32 s2, 448")
    a("s_cbranch_scc1 L_rexit")
    a("s_load_dwordx2 s[4:5], s[0:1], 56")
    a("s_load_dwordx2 s[6:7], s[0:1], 40")
    a("v_lshrrev_b32 v2, 6, v0")
    a("v_and_b32 v1, 63, v0")
    a("v_readfirstlane_b32 s3, v2")
    a("s_lshl_b32 s8, s2, 2")
    a("s_add_u32 s8, s8, s3")
    a("s_mul_i32 s9, s8, 18725")
    a("s_lshr_b32 s9, s9, 20")
    a("s_mul_i32 s10, s9, 56")
    a("s_sub_u32 s10, s8, s10")
    a("s_mul_i32 s11, s10, 37")
    a("s_lshr_b32 s11, s11, 8")
    a("s_mul_i32 s12, s11, 7")
    a("s_sub_u32 s12, s10, s12")
    a("s_mul_i32 s13, s9, %d" % (8 * 114688))
    a("s_lshl_b32 s14, s10, 11")
    a("s_add_u32 s13, s13, s14")
    a("s_mul_i32 s15, s9, 114688")
    a("s_mul_i32 s16, s11, %d" % (16 * 896))
    a("s_add_u32 s15, s15, s16")
    a("s_lshl_b32 s16, s12, 7")
    a("s_add_u32 s15, s15, s16")
    a("v_lshlrev_b32 v3, 4, v1")
    a("v_and_b32 v4, 15, v1")
    a("v_mul_u32_u24 v4, 896, v4")
    a("v_lshrrev_b32 v5, 4, v1")
    a("v_lshl_add_u32 v4, v5, 4, v4")
    a("s_waitcnt lgkmcnt(0)")
    a("s_mov_b32 s20, s4"); a("s_mov_b32 s21, s5"); a("s_mov_b32 s22, %d" % (256 * 114688)); a("s_mov_b32 s23, 0x00020000")
    a("s_mov_b32 s24, s6"); a("s_mov_b32 s25, s7"); a("s_mov_b32 s26, %d" % (32 * 114688)); a("s_mov_b32 s27, 0x00020000")
    for p in range(8):
        for c in range(2):
            r = 8 + (c * 8 + p) * 4
            a("buffer_load_dwordx4 %s, v3, s[20:23], s13 offen offset:%d" % (vr(r), c * 1024))
        if p < 7: a("s_add_u32 s13, s13, 114688")
    acc = 72
    for p in range(8):
        a("s_waitcnt vmcnt(%d)" % (14 - 2 * p))
        for c in range(2):
            r = 8 + (c * 8 + p) * 4
            for j in range(4):
                d = acc + 8 * c + 2 * j
                if p == 0:
                    a("v_lshlrev_b32 v%d, 16, v%d" % (d, r + j)); a("v_and_b32 v%d, 0xffff0000, v%d" % (d + 1, r + j))
                else:
                    a("v_lshlrev_b32 v6, 16, v%d" % (r + j)); a("v_and_b32 v7, 0xffff0000, v%d" % (r + j))
                    a("v_add_f32 v%d, v%d, v6" % (d, d)); a("v_add_f32 v%d, v%d, v7" % (d + 1, d + 1))
    for c in range(2):
        for j in range(4): a("v_cvt_pk_bf16_f32 v%d, v%d, v%d" % (8 + 4 * c + j, acc + 8 * c + 2 * j, acc + 8 * c + 2 * j + 1))
    a("s_nop 1")
    for c in range(2):
        a("v_permlane32_swap_b32 v%d, v%d" % (8 + 4 * c, 10 + 4 * c))
        a("v_permlane32_swap_b32 v%d, v%d" % (9 + 4 * c, 11 + 4 * c))
    for c in range(2):
        a("buffer_store_dwordx4 %s, v4, s[24:27], s15 offen offset:%d" % (vr(8 + 4 * c), 64 * c))
    a.label("L_rexit")
    a("s_endpgm")
    kernel_desc(a, "main_kernel", 512, 102, 256)
    kernel_desc(a, "red_kernel", 88, 32, 88)
    open(fn, "w").write(a.text())
    print("hazard errors:", errs)

if __name__ == "__main__":
    ap = argparse.ArgumentParser()
    ap.add_argument("out")
    ap.add_argument("--set", nargs="*", default=[])
    args = ap.parse_args()
    opt = Opt()
    for kvp in args.set:
        k, v = kvp.split("=")
        cur = getattr(Opt, k)
        setattr(opt, k, v if cur is None else type(cur)(int(v)) if isinstance(cur, bool) else type(cur)(v))
    generate(opt, args.out)
```

```python
KN = "standalone__mha_block_cached__near_ridge_kernel"
class Asm:
    def __init__(self):
        self.lines = []
        self.uid = 0
    def __call__(self, s=""):
        for l in s.split("\n"):
            self.lines.append("    " + l.strip() if l.strip() and not l.strip().endswith(":") else l.strip())
    def label(self, n):
        self.lines.append(n + ":")
    def newlabel(self, p="L"):
        self.uid += 1
        return "%s_%d" % (p, self.uid)
    def text(self):
        return "\n".join(self.lines) + "\n"

def kernel_begin(a, name):
    a(".text")
    a(".globl %s" % name)
    a(".p2align 8")
    a(".type %s,@function" % name)
    a.label(name)

def kernel_desc(a, name, vgpr, sgpr, accum):
    a('.section .rodata,"a"')
    a(".p2align 6")
    a.lines.append(".amdhsa_kernel %s" % name)
    a(".amdhsa_next_free_vgpr %d" % vgpr)
    a(".amdhsa_next_free_sgpr %d" % sgpr)
    a(".amdhsa_accum_offset %d" % accum)
    a(".amdhsa_group_segment_fixed_size 0")
    a(".amdhsa_kernarg_size 64")
    a(".amdhsa_user_sgpr_count 2")
    a(".amdhsa_user_sgpr_kernarg_segment_ptr 1")
    a(".amdhsa_system_sgpr_workgroup_id_x 1")
    a.lines.append(".end_amdhsa_kernel")

def srd(a, d, base, nbytes, off_s=None, off_hi=None):
    if off_s is None:
        a("s_mov_b32 s%d, s%d" % (d, base))
        a("s_mov_b32 s%d, s%d" % (d + 1, base + 1))
    else:
        a("s_add_u32 s%d, s%d, s%d" % (d, base, off_s))
        a("s_addc_u32 s%d, s%d, %s" % (d + 1, base + 1, "0" if off_hi is None else "s%d" % off_hi))
    a("s_mov_b32 s%d, 0x%x" % (d + 2, nbytes))
    a("s_mov_b32 s%d, 0x00020000" % (d + 3))
```

```python
import sys, re, argparse, struct
from gl import Asm, kernel_begin, kernel_desc
from gen import It, V, E, SC, VM, gap_cost, check_hazards, vr, ar, sr, MF, srd_build

class Opt:
    PD = 6
    NS = 9
    bar2 = False
    stamps = False
    thr = 10.0
    ia = 5
    ib = 4
    maxper = 3
    wtouch = True
    wotouch_step = 16
    xnt = False
    map = 0
    red = True
    nodma = False
    cyc = False
    nomf = False
    l2kv = False

PITCH = 1056
SLOT = 16 * PITCH
FR0 = 224
def P(j, qb): return 8 * j + 4 * qb
def Q(s, qb): return 128 + 8 * s + 4 * qb
def S(par, kb, qb): return 192 + 16 * par + 8 * kb + 4 * qb
def NEGM(qb): return 224 + 4 * qb
ONES = 232
vKA = [236, 237, 238]
vTR = [239, 240, 241]
vT0, vT1, vT2, vT3 = 242, 243, 244, 245
vD = 246
vW = 250
vDELTA = 254
vDUM = 255
def OUT(half, nb, qb): return (half * 14 + nb) * 8 + 4 * qb
REGB = [0, 4 * SLOT, 8 * SLOT]

sK, sV, sWQ, sWO, sX, sO = 4, 8, 12, 16, 20, 24
sB1, sT0, sT1, sC, sTHR, sWAVE, sWOB = 28, 29, 30, 31, 32, 33, 34
sRET = 36
sWOT = 40
sST = 48

ORDER = {"ds": 0, "vmw": 1, "bar": 2, "s": 3, "lgw": 3, "lab": 3, "vm": 4, "v": 5, "e": 5, "spost": 9, "labpost": 9}

class Tile:
    def __init__(self, kind, soff): self.kind, self.soff, self.slot = kind, soff, None

class Seg:
    def __init__(self, name, tile):
        self.name, self.tile = name, tile
        self.frags = []; self.mf = []
        self.bar = False; self.vmtags = []
        self.at = {}; self.vq = []; self.sq = []
        self.post = []
        self.dmagaps = None
    def put(self, gap, *items): self.at.setdefault(gap, []).extend(items)

class Emit:
    def __init__(self, opt):
        self.opt = opt; self.trace = []; self.fbase = 0; self.cost = 0
    def out(self, it): self.trace.append(it)
    def raw(self, *items):
        for it in items:
            self.out(it)
            if it.k not in ("lab", "labpost", "cm"): self.cost += 8 if it.k in ("e", "vm", "ds") else 4
    def freg(self, F): return FR0 + 4 * (F % 8)
    def reads_of(self, seg, f, F):
        r = self.freg(F)
        return [It("ds", tpl(r), ("f", F)) for tpl in seg.frags[f]]
    def head_reads(self, nxt, Fn):
        L = []
        if nxt is None: return L
        if nxt.bar: L.append((0, It("sync", None, nxt.vmtags)))
        for f in range(self.opt.PD):
            for it in self.reads_of(nxt, f, Fn + f): L.append((f, it))
        return L
    def prime(self, nxt):
        for f, it in self.head_reads(nxt, self.fbase):
            if it.k == "sync": self.raw(It("vmw", None, it.tag), It("bar", "s_barrier"))
            else: self.raw(it)
        self.raw(It("lgw", None, ("f", self.fbase + 1)))
    def seg(self, seg, nxt):
        PD = self.opt.PD
        nf = len(seg.frags); n = len(seg.mf); F0 = self.fbase
        assert nf % 2 == 0
        rq = []
        for f in range(PD, nf):
            for it in self.reads_of(seg, f, F0 + f): rq.append((f, it))
        for f, it in self.head_reads(nxt, F0 + nf): rq.append((nf + f, it))
        gaps = [[] for _ in range(n)]
        cf = -1
        for i in range(n):
            if seg.mf[i][0] is not None: cf = seg.mf[i][0]
            want = 99 if i == n - 1 else 1
            while rq and want > 0 and (rq[0][0] <= cf + PD or i == n - 1):
                f, it = rq.pop(0)
                assert it.k == "ds"
                gaps[i].append(it); want -= 1
                if rq and rq[0][1].k == "sync":
                    _, sy = rq.pop(0)
                    gaps[i].append(It("vmw", None, sy.tag)); gaps[i].append(It("bar", "s_barrier"))
                    break
            if i + 1 < n:
                fn = seg.mf[i + 1][0]
                if fn is not None and fn != cf and fn % 2 == 0 and fn > 0: gaps[i].append(It("lgw", None, ("f", F0 + fn + 1)))
            elif nxt is not None:
                gaps[i].append(It("lgw", None, ("f", F0 + nf + 1)))
        assert not rq
        if seg.bar and self.opt.bar2: gaps[0].append(It("bar", "s_barrier"))
        for g, items in seg.at.items(): gaps[g if g >= 0 else n + g].extend(items)
        def extra(g, it): return gap_cost(gaps[g] + [it]) - max(16, gap_cost(gaps[g]))
        def place(q):
            q = list(q)
            if not q: return
            for L in range(0, 400, 4):
                for start_over in range(n, -1, -1) if L else [0]:
                    tmp = {}; g = 0; ok = True
                    for it in q:
                        g = max(g, it.lo); hi = min(it.hi, n - 1)
                        while True:
                            if g > hi: ok = False; break
                            base = gaps[g] + tmp.get(g, [])
                            lim = max(16, gap_cost(gaps[g])) + (L if g >= start_over else max(0, L - 4))
                            if gap_cost(base + [it]) <= lim:
                                tmp.setdefault(g, []).append(it); break
                            g += 1
                        if not ok: break
                    if ok:
                        for g, its in tmp.items(): gaps[g].extend(its)
                        return
            raise AssertionError("cannot place in " + seg.name)
        place(seg.sq); place(seg.vq)
        self.out(It("cm", "; " + seg.name))
        for i in range(n):
            f, tpl = seg.mf[i]
            self.out(It("m", tpl.replace("{A}", ar(self.freg(F0 + f)) if f is not None else "")))
            items = sorted(gaps[i], key=lambda x: ORDER[x.k])
            self.cost += gap_cost([x for x in items])
            for it in items: self.out(it)
        self.fbase += nf
        self.raw(*seg.post)
    def lines(self):
        cnt = {"ds": 0, "vm": 0}; last = {}; L = []; started = False
        for it in self.trace:
            if it.k == "m": started = True
            if started and self.opt.nodma and it.k in ("vm", "vmw"): continue
            if started and self.opt.nomf and (it.k in ("m", "ds", "e", "lgw") or (it.k == "v" and not re.match(r"v_(add|sub|mbcnt|lshr|lshl|and|min|mul)\w*_[ub]32\S* v2[45]\d", it.t)) or (it.t or "").startswith("s_cbranch_vcc")): continue
            if it.k in ("ds", "vm"):
                cnt[it.k] += 1
                if it.tag is not None: last[it.tag] = cnt[it.k]
                L.append((it.k, it.t))
            elif it.k == "lgw":
                L.append(("s", "s_waitcnt lgkmcnt(%d)" % min(15, cnt["ds"] - last[it.tag])))
            elif it.k == "vmw":
                n = min(cnt["vm"] - last[tg] for tg in it.tag)
                L.append(("s", "s_waitcnt vmcnt(%d)" % min(63, n)))
            else: L.append((it.k, it.t))
        return L

def lds_addr(regs, tile, inner):
    off = tile.slot * SLOT
    r = 0 if tile.slot < 4 else 1 if tile.slot < 8 else 2
    return regs[r], off - REGB[r] + inner
def trpair(tile, o0, o1):
    def mk(o, d):
        def f(r):
            v, off = lds_addr(vTR, tile, o)
            return "ds_read_b64_tr_b16 %s, v%d offset:%d" % (ar(r + d, 2), v, off)
        return f
    return [mk(o0, 0), mk(o1, 2)]

class Gen:
    def __init__(self, opt):
        self.opt = opt; self.R = Emit(opt); self.rare = []
        self.kvpat = "k"; self.wpat = "wq"
    def xreg(self, phase, s, qb):
        if s >= 2: return ar(128 + 8 * (s - 2) + 4 * qb)
        if s == 0 or phase == "A": return vr(208 + 8 * s + 4 * qb)
        return vr(120 + 4 * qb)
    def qp_seg(self, ph, j, tile):
        s = Seg("%s qp%d" % (ph, j), tile)
        for db in range(16):
            s.frags.append(trpair(tile, db * 32, db * 32 + 512))
            for qb in range(2):
                d = (vr if ph == "A" else ar)(8 * db + 4 * qb)
                s.mf.append((db, "%s %s, {A}, %s, %s" % (MF, d, self.xreg(ph, j, qb), "0" if j == 0 else d)))
        if ph == "A": s.xtag = ("x", j)
        return s
    def sm_ops(self, j):
        par = j & 1; ex = []; cv = []
        for kb in range(2):
            for qb in range(2):
                for hlf in range(2):
                    b = S(par, kb, qb) + 2 * hlf
                    ex += ["v_exp_f32 v%d, v%d" % (b, b), "v_exp_f32 v%d, v%d" % (b + 1, b + 1)]
                    cv.append("v_cvt_pk_bf16_f32 v%d, v%d, v%d" % (P(j, qb) + 2 * kb + hlf, b, b + 1))
        return ex, cv
    def max_ops(self, j):
        a = [S(j & 1, 0, 0) + r for r in range(16)]
        L = ["v_max3_f32 v%d, v%d, v%d, v%d" % (vT0, a[0], a[1], a[2])]
        for i in range(3, 15, 2): L.append("v_max3_f32 v%d, v%d, v%d, v%d" % (vT0, vT0, a[i], a[i + 1]))
        L.append("v_max_f32 v%d, v%d, v%d" % (vT0, vT0, a[15]))
        L.append("v_cmp_lt_f32 vcc, s%d, v%d" % (sTHR, vT0))
        return L[:3], L[3:]
    def rare_branch(self, ph, j, post=True):
        self.rare.append((ph, j))
        return [It("spost" if post else "s", "s_cbranch_vccnz L_rs%s%d" % (ph, j)), It("labpost" if post else "lab", "L_rb%s%d" % (ph, j))]
    def init_ops(self):
        q = []; t = [vT0, vT1]; u = [vT2, vT3]
        for k in range(4):
            for qb in range(2):
                r = [S(0, kb, qb) + i for kb in range(2) for i in range(4)]
                if k == 0: q.append("v_max3_f32 v%d, v%d, v%d, v%d" % (t[qb], r[0], r[1], r[2]))
                elif k < 3: q.append("v_max3_f32 v%d, v%d, v%d, v%d" % (t[qb], t[qb], r[2 * k + 1], r[2 * k + 2]))
                else: q.append("v_max_f32 v%d, v%d, v%d" % (t[qb], t[qb], r[7]))
        for sw in ("32", "16"):
            for qb in range(2): q.append("v_mov_b32 v%d, v%d" % (u[qb], t[qb]))
            q.append("v_nop")
            for qb in range(2): q.append("v_permlane%s_swap_b32 v%d, v%d" % (sw, t[qb], u[qb]))
            for qb in range(2): q.append("v_max_f32 v%d, v%d, v%d" % (t[qb], t[qb], u[qb]))
        for qb in range(2):
            for r in range(4): q.append("v_sub_f32 v%d, 0, v%d" % (NEGM(qb) + r, t[qb]))
        for kb in range(2):
            for qb in range(2):
                for r in range(4): q.append("v_sub_f32 v%d, v%d, v%d" % (S(0, kb, qb) + r, S(0, kb, qb) + r, t[qb]))
        return q
    def qk_seg(self, ph, m, tile):
        par = m & 1
        s = Seg("%s qk%d" % (ph, m), tile)
        for kb in range(2):
            for ks in range(8):
                def f(r, o=kb * 512 + ks * 64):
                    v, off = lds_addr(vKA, tile, o)
                    return "ds_read_b128 %s, v%d offset:%d" % (ar(r), v, off)
                s.frags.append([f])
                for qb in range(2):
                    d = vr(S(par, kb, qb))
                    c = d if ks else ("0" if m == 0 else vr(NEGM(qb)))
                    s.mf.append((kb * 8 + ks, "%s %s, {A}, %s, %s" % (MF, d, vr(Q(ks, qb)), c)))
        if m >= 1:
            ex, cv = self.sm_ops(m - 1)
            for i in range(16): s.put(2 * i + 1, E(ex[i]))
            for k in range(7): s.put(4 * k + 4, V(cv[k]))
            m0, m1 = self.max_ops(m)
            for t, g in zip(m0, (22, 26, 30)): s.put(g, V(t))
        s.dmagaps = [2, 6, 10, 14, 18]
        return s
    def after_qk(self, ph, m, qk, pj):
        q = []
        if m >= 1: q.append(V(self.sm_ops(m - 1)[1][7]))
        if m == 0:
            pj.vq += [V(t, lo=3, hi=len(pj.mf) - 2) for t in self.init_ops()]
            return
        m0, m1 = self.max_ops(m)
        if pj is not None:
            pj.vq += q + [V(t, lo=3) for t in m1]
            for it in self.rare_branch(ph, m): pj.put(-1, it)
        else:
            qk.post += [SC("s_nop 0")] + q + [SC("s_nop 3")] + [V(t) for t in m1] + self.rare_branch(ph, m, False)
    def pv_seg(self, ph, c, t, tile, oacc, ll):
        s = Seg("%s pv%d.%d" % (ph, c, t), tile)
        for k in range(4):
            j = 4 * t + k
            if c == 0:
                for qb in range(2):
                    d = vr(ll(qb))
                    s.mf.append((None, "%s %s, %s, %s, %s" % (MF, d, vr(ONES), vr(P(j, qb)), "0" if j == 0 else d)))
            for db in range(4):
                s.frags.append(trpair(tile, 2 * k * 128 + db * 32, (2 * k + 1) * 128 + db * 32))
                for qb in range(2):
                    d = vr(oacc(db, qb))
                    s.mf.append((4 * k + db, "%s %s, {A}, %s, %s" % (MF, d, vr(P(j, qb)), "0" if j == 0 else d)))
        return s
    def op_seg(self, ph, i, tile, obf, zero):
        half = i & 1
        s = Seg("%s op%d" % (ph, i), tile)
        for nb in range(14):
            s.frags.append(trpair(tile, nb * 32, nb * 32 + 512))
            for qb in range(2):
                d = ar(OUT(half, nb, qb))
                s.mf.append((nb, "%s %s, {A}, %s, %s" % (MF, d, vr(obf(qb)), "0" if zero else d)))
        return s
    def norm_ops(self, u, oacc, dst, rl):
        q = []
        for o in range(2):
            for qb in range(2):
                b = oacc(2 * u + o, qb)
                for r in range(4): q.append("v_mul_f32 v%d, v%d, v%d" % (b + r, b + r, rl(qb)))
                for hlf in range(2): q.append("v_cvt_pk_bf16_f32 v%d, v%d, v%d" % (dst(qb) + 2 * o + hlf, b + 2 * hlf, b + 2 * hlf + 1))
        return q
    def dma(self, tile):
        pre = []
        if tile.kind in "kv":
            if tile.kind != self.kvpat:
                op = "v_add_u32" if tile.kind == "v" else "v_sub_u32"
                pre += [V("%s v%d, v%d, v%d" % (op, vD + p, vD + p, vDELTA)) for p in range(4)]
                self.kvpat = tile.kind
            vb, srd, nt = vD, (sK if tile.kind == "k" else sV), " nt"
        else:
            if tile.kind != self.wpat:
                w = vW
                pre += [V("v_mbcnt_lo_u32_b32 v%d, -1, 0" % w), V("v_mbcnt_hi_u32_b32 v%d, -1, v%d" % (w, w)),
                        V("v_lshrrev_b32 v%d, 5, v%d" % (w + 1, w)), V("v_and_b32 v%d, 31, v%d" % (w + 2, w)), V("v_min_u32 v%d, 27, v%d" % (w + 2, w + 2)),
                        V("v_mul_u32_u24 v%d, %d, v%d" % (w + 1, 16 * 896, w + 1)), V("v_lshl_add_u32 v%d, v%d, 4, v%d" % (w + 3, w + 2, w + 1)),
                        V("v_add_u32 v%d, s%d, v%d" % (w + 3, sWOB, w + 3))]
                pre += [V("v_add_u32 v%d, %d, v%d" % (w + p, 480 - 160 * p, w + 3)) for p in range(3)]
                self.wpat = tile.kind
            vb, srd, nt = vW, (sWQ if tile.kind == "wq" else sWO), ""
        pre += [SC("s_add_u32 m0, s%d, %d" % (sB1, tile.slot * SLOT)), SC("s_mov_b32 s%d, %d" % (sT0, tile.soff))]
        return (pre, [VM("buffer_load_dwordx4 v%d, %s, s%d offen offset:%d%s lds" % (vb + p, sr(srd), sT0, p * PITCH, nt), ("t", id(tile))) for p in range(4)])
    def spread(self, segs, G):
        nvm = sum(len(v) for _, v in G)
        if not nvm: return
        cand = []
        for s in segs:
            gl_ = s.dmagaps if s.dmagaps is not None else list(range(1, len(s.mf) - 1))
            cand += [(s, g) for g in gl_]
        if nvm > len(cand):
            cand = [(s, g) for s in segs for g in range(2, len(s.mf) - 1, 2)]
        assert nvm <= len(cand), (segs[0].name, nvm)
        k = 0; last = None
        for pre, vms in G:
            s, g = cand[k * len(cand) // nvm]
            same = last == (s, g - 1)
            for x in pre:
                s.put(g - 1, It("spost", x.t) if (same and x.k == "s") else x)
            for vm in vms:
                s, g = cand[k * len(cand) // nvm]
                s.put(g, vm); k += 1; last = (s, g)
    def stamp(self, k):
        if not self.opt.stamps: return []
        return [SC("s_memrealtime s[%d:%d]" % (sST + 16, sST + 17)), SC("s_waitcnt lgkmcnt(0)"), SC("s_mov_b32 s%d, s%d" % (sST + k, sST + 16))]

    def build(self):
        opt = self.opt; R = self.R
        wq = [[Tile("wq", h * 512 + j * 32 * 8192) for j in range(14)] for h in range(2)]
        wo = [[Tile("wo", h * 229376 + (i >> 1) * 32 * 896 + (i & 1) * 448) for i in range(16)] for h in range(2)]
        kt = [[Tile("k", h * 262144 + m * 16384) for m in range(16)] for h in range(2)]
        vt = [[Tile("v", h * 262144 + (n & 3) * 65536 + (n >> 2) * 128) for n in range(16)] for h in range(2)]
        if opt.l2kv:
            for t in kt[0] + kt[1] + vt[0] + vt[1]: t.soff &= 0xffff if t.kind == "k" else 0x1ff
        steps = []
        for j in range(14): steps.append([self.qp_seg("A", j, wq[0][j])])
        lastA = steps[-1][0]
        cvq = []
        for ks in range(8):
            for qb in range(2):
                for o in range(2):
                    b = 8 * (2 * ks + o) + 4 * qb
                    cvq += [V("v_mul_f32 v%d, s%d, v%d" % (b + r, sC, b + r)) for r in range(4)]
            for qb in range(2):
                for o in range(2):
                    b = 8 * (2 * ks + o) + 4 * qb
                    cvq += [V("v_cvt_pk_bf16_f32 v%d, v%d, v%d" % (Q(ks, qb) + 2 * o + hlf, b + 2 * hlf, b + 2 * hlf + 1)) for hlf in range(2)]
            cvq += [V("v_permlane32_swap_b32 v%d, v%d" % (Q(ks, qb) + i, Q(ks, qb) + 2 + i)) for qb in range(2) for i in range(2)]
        lastA.post += self.stamp(1) + cvq + self.stamp(2)
        for m in range(16):
            qk = self.qk_seg("B", m, kt[0][m])
            pj = self.qp_seg("B", m, wq[1][m]) if m < 14 else None
            if m == 0: qk.vq += [V("v_mov_b32 v%d, v%d" % (120 + i, 216 + i)) for i in range(8)]
            self.after_qk("B", m, qk, pj)
            steps.append([qk] + ([pj] if pj else []))
        ex, cv = self.sm_ops(15)
        tail = []
        for k in range(8): tail += [E(ex[2 * k]), E(ex[2 * k + 1])] + ([V(cv[k - 1])] if k else [])
        steps[-1][-1].post += tail + [SC("s_nop 0"), V(cv[7])] + self.stamp(3)
        oc = lambda db, qb: 192 + 8 * db + 4 * qb
        rlc = lambda qb: vT0 + qb
        q2 = []
        for ks in range(8):
            for qb in range(2):
                for o in range(2):
                    for hlf in range(2):
                        b = 8 * (2 * ks + o) + 4 * qb + 2 * hlf
                        q2 += [V("v_accvgpr_read_b32 v%d, a%d" % (vT2, b)), V("v_accvgpr_read_b32 v%d, a%d" % (vT3, b + 1)),
                               V("v_mul_f32 v%d, s%d, v%d" % (vT2, sC, vT2)), V("v_mul_f32 v%d, s%d, v%d" % (vT3, sC, vT3)),
                               V("v_cvt_pk_bf16_f32 v%d, v%d, v%d" % (Q(ks, qb) + 2 * o + hlf, vT2, vT3))]
                if qb == 1:
                    q2 += [V("v_permlane32_swap_b32 v%d, v%d" % (Q(ks, 0) + i, Q(ks, 0) + 2 + i)) for i in range(2)]
                    q2 += [V("v_permlane32_swap_b32 v%d, v%d" % (Q(ks, 1) + i, Q(ks, 1) + 2 + i)) for i in range(2)]
        for n in range(16):
            c, t = n >> 2, n & 3
            s = self.pv_seg("C", c, t, vt[0][n], oc, NEGM)
            s.vq += q2[22 * n: 22 * n + 22]
            if n == 3: s.vq += [E("v_rcp_f32 v%d, v%d" % (rlc(qb), NEGM(qb)), lo=36) for qb in range(2)]
            if t == 3:
                post = []
                for u in range(2):
                    if c < 3:
                        dst = lambda qb, u=u: oc(2 * u, qb)
                        ops = self.norm_ops(u, oc, dst, rlc)
                        post += [V(x) for x in ops]
                        post += [V("v_accvgpr_write_b32 a%d, v%d" % (128 + 8 * (2 * c + u) + 4 * qb + r, dst(qb) + r)) for qb in range(2) for r in range(4)]
                    else:
                        post += [V(x) for x in self.norm_ops(u, oc, lambda qb, u=u: P(14 + u, qb), rlc)]
                s.post += post
            steps.append([s])
        steps[-1][-1].post += self.stamp(4)
        for m in range(16):
            qk = self.qk_seg("D", m, kt[1][m])
            pj = self.op_seg("D", m, wo[0][m], lambda qb, u=m >> 1: P(8 + u, qb), m < 2)
            if m == 0: qk.vq += [V("v_accvgpr_read_b32 v%d, a%d" % (64 + i, 128 + i), hi=30) for i in range(48)]
            self.after_qk("D", m, qk, pj)
            steps.append([qk, pj])
        steps[-1][-1].post += self.stamp(5)
        oe = lambda db, qb: 128 + 8 * db + 4 * qb
        obf = lambda u: (lambda qb: 160 + 8 * u + 4 * qb)
        lle = lambda qb: 176 + 4 * qb
        rle = lambda qb: 188 + qb
        ex, cv = self.sm_ops(15)
        for t in range(4):
            s = self.pv_seg("E", 0, t, vt[1][t], oe, lle)
            if t < 2:
                for k in range(4 * t, 4 * t + 4): s.vq += [E(ex[2 * k]), E(ex[2 * k + 1])] + ([V(cv[k - 1])] if k else [])
            if t == 2: s.vq += [V(cv[7])]
            if t == 3:
                s.vq += [E("v_rcp_f32 v%d, v%d" % (rle(qb), lle(qb)), lo=36) for qb in range(2)]
                s.post += [V(x) for x in self.norm_ops(0, oe, obf(0), rle)] + [SC("s_nop 1")] + self.stamp(6)
            steps.append([s])
        for c in range(1, 4):
            for t in range(4):
                i = 4 * (c - 1) + t
                op = self.op_seg("E", i, wo[1][i], obf((i >> 1) & 1), False)
                pv = self.pv_seg("E", c, t, vt[1][4 * c + t], oe, lle)
                if t == 0: op.vq += [V(x) for x in self.norm_ops(1, oe, obf(1), rle)]; op.dmagaps = []
                if t == 3: op.vq += [V(x, lo=1, hi=26) for x in self.norm_ops(0, oe, obf(0), rle)]; op.dmagaps = []
                steps.append([op, pv] if t == 0 else [pv, op])
        steps[-1][-1].post += self.stamp(8)
        for i in range(12, 16):
            op = self.op_seg("E", i, wo[1][i], obf((i >> 1) & 1), False)
            if i == 12: op.vq += [V(x) for x in self.norm_ops(1, oe, obf(1), rle)]
            steps.append([op])
        cons = [s.tile for st in steps for s in st]
        early = kt[0][:opt.ib]
        order = cons[:opt.ia] + early + [t for t in cons[opt.ia:] if t not in early]
        free = list(range(opt.NS)); ptr = 0; reqstep = {}
        pro = []
        while free:
            order[ptr].slot = free.pop(0); pro.append(order[ptr]); reqstep[id(order[ptr])] = -2; ptr += 1
        issue = []
        for si, st in enumerate(steps):
            if si > 0: free += [s.tile.slot for s in steps[si - 1]]
            L = []
            while free and ptr < len(order) and len(L) < opt.maxper:
                order[ptr].slot = free.pop(0); L.append(order[ptr]); reqstep[id(order[ptr])] = si; ptr += 1
            issue.append(L)
            for s in st: assert reqstep[id(s.tile)] <= si - 2, (s.name, si, reqstep[id(s.tile)])
            st[0].bar = True; st[0].vmtags = [("t", id(s.tile)) for s in st] + [s.xtag for s in st if hasattr(s, "xtag")]
        xn = " nt" if opt.xnt else ""
        def xload(s):
            return [VM("buffer_load_dwordx4 %s, v%d, %s, 0 offen offset:%d%s" % (self.xreg("A", s, qb), 6 + qb, sr(sX), 64 * s, xn), ("x", s)) for qb in range(2)]
        def issue_now(t):
            pre, vms = self.dma(t); R.raw(*pre); R.raw(*vms)
        R.raw(*xload(0)); R.raw(*xload(1))
        issue_now(pro[0])
        if opt.wtouch:
            R.raw(VM("buffer_load_dword v%d, v8, %s, 0 offen" % (vDUM, sr(sWQ))))
        R.raw(VM("global_load_dword v%d, v9, s[%d:%d]" % (vDUM, sRET, sRET + 1)))
        nx = 2
        for k, t in enumerate(pro[1:]):
            issue_now(t)
            if nx < 14:
                R.raw(*xload(nx)); R.raw(*xload(nx + 1)); nx += 2
            if k == 5: R.raw(SC("s_waitcnt vmcnt(40)"))
        assert nx >= 14
        for r in range(4): R.raw(V("v_mov_b32 v%d, 0x3f803f80" % (ONES + r)))
        for si, st in enumerate(steps):
            G = [self.dma(t) for t in issue[si]]
            if opt.wtouch and si == opt.wotouch_step:
                G.append(([V("v_mbcnt_lo_u32_b32 v%d, -1, 0" % vDUM), V("v_mbcnt_hi_u32_b32 v%d, -1, v%d" % (vDUM, vDUM)), V("v_lshlrev_b32 v%d, 7, v%d" % (vDUM, vDUM))],
                          [VM("buffer_load_dword v%d, v%d, %s, s%d offen" % (vDUM, vDUM, sr(sWOT), sT1))]))
            self.spread(st, G)
        flat = [s for st in steps for s in st]
        R.prime(flat[0]); R.raw(*self.stamp(0))
        for k, s in enumerate(flat):
            R.seg(s, flat[k + 1] if k + 1 < len(flat) else None)

def rare_code(a, sites):
    for (ph, j) in sites:
        a.label("L_rs%s%d" % (ph, j))
        a("s_call_b64 s[%d:%d], L_rare%d" % (sRET, sRET + 1, j & 1))
        a("s_call_b64 s[%d:%d], L_scale%d" % (sRET, sRET + 1, j - 1))
        a("s_branch L_rb%s%d" % (ph, j))
    t = [vT0, vT1]; u = [vT2, vT3]
    for par in range(2):
        a.label("L_rare%d" % par)
        for qb in range(2):
            r = [S(par, kb, qb) + i for kb in range(2) for i in range(4)]
            a("v_max3_f32 v%d, v%d, v%d, v%d" % (t[qb], r[0], r[1], r[2]))
            a("v_max3_f32 v%d, v%d, v%d, v%d" % (t[qb], t[qb], r[3], r[4]))
            a("v_max3_f32 v%d, v%d, v%d, v%d" % (t[qb], t[qb], r[5], r[6]))
            a("v_max_f32 v%d, v%d, v%d" % (t[qb], t[qb], r[7]))
        for sw in ("32", "16"):
            for qb in range(2): a("v_mov_b32 v%d, v%d" % (u[qb], t[qb]))
            a("s_nop 1")
            for qb in range(2): a("v_permlane%s_swap_b32 v%d, v%d" % (sw, t[qb], u[qb]))
            for qb in range(2): a("v_max_f32 v%d, v%d, v%d" % (t[qb], t[qb], u[qb]))
        for qb in range(2):
            a("v_ceil_f32 v%d, v%d" % (t[qb], t[qb]))
            a("v_max_f32 v%d, 0, v%d" % (t[qb], t[qb]))
            for r in range(4): a("v_sub_f32 v%d, v%d, v%d" % (NEGM(qb) + r, NEGM(qb) + r, t[qb]))
            for kb in range(2):
                for r in range(4): a("v_sub_f32 v%d, v%d, v%d" % (S(par, kb, qb) + r, S(par, kb, qb) + r, t[qb]))
            a("v_min_f32 v%d, 0x437f0000, v%d" % (u[qb], t[qb]))
            a("v_cvt_u32_f32 v%d, v%d" % (u[qb], u[qb]))
            a("v_mul_u32_u24 v%d, 0x800080, v%d" % (u[qb], u[qb]))
        a("s_setpc_b64 s[%d:%d]" % (sRET, sRET + 1))
    for j in range(14, -1, -1):
        a.label("L_scale%d" % j)
        for qb in range(2):
            for r in range(4): a("v_pk_sub_u16 v%d, v%d, v%d clamp" % (P(j, qb) + r, P(j, qb) + r, u[qb]))
    a("s_nop 1")
    a("s_setpc_b64 s[%d:%d]" % (sRET, sRET + 1))

HEADER = """; Fused MHA block: out = softmax((x Wq) K^T / 16) V Wo   (B=32, Sq=128, D=448, H=16, Sk=512, Dh=256)
"""

def red_kernel(a):
    kernel_begin(a, "red_kernel")
    a("s_cmp_ge_u32 s2, 448")
    a("s_cbranch_scc1 L_rexit")
    a("s_load_dwordx2 s[4:5], s[0:1], 56")
    a("s_load_dwordx2 s[6:7], s[0:1], 40")
    a("v_lshrrev_b32 v2, 6, v0")
    a("v_and_b32 v1, 63, v0")
    a("v_readfirstlane_b32 s3, v2")
    a("s_lshl_b32 s8, s2, 2")
    a("s_add_u32 s8, s8, s3")
    a("s_mul_i32 s9, s8, 18725")
    a("s_lshr_b32 s9, s9, 20")
    a("s_mul_i32 s10, s9, 56")
    a("s_sub_u32 s10, s8, s10")
    a("s_mul_i32 s11, s10, 37")
    a("s_lshr_b32 s11, s11, 8")
    a("s_mul_i32 s12, s11, 7")
    a("s_sub_u32 s12, s10, s12")
    a("s_mul_i32 s13, s9, %d" % (8 * 114688))
    a("s_lshl_b32 s14, s10, 11")
    a("s_add_u32 s13, s13, s14")
    a("s_mul_i32 s15, s9, 114688")
    a("s_mul_i32 s16, s11, %d" % (16 * 896))
    a("s_add_u32 s15, s15, s16")
    a("s_lshl_b32 s16, s12, 7")
    a("s_add_u32 s15, s15, s16")
    a("v_lshlrev_b32 v3, 4, v1")
    a("v_and_b32 v4, 15, v1")
    a("v_mul_u32_u24 v4, 896, v4")
    a("v_lshrrev_b32 v5, 4, v1")
    a("v_lshl_add_u32 v4, v5, 4, v4")
    a("s_waitcnt lgkmcnt(0)")
    a("s_mov_b32 s20, s4"); a("s_mov_b32 s21, s5"); a("s_mov_b32 s22, %d" % (256 * 114688)); a("s_mov_b32 s23, 0x00020000")
    a("s_mov_b32 s24, s6"); a("s_mov_b32 s25, s7"); a("s_mov_b32 s26, %d" % (32 * 114688)); a("s_mov_b32 s27, 0x00020000")
    for p in range(8):
        for c in range(2):
            r = 8 + (c * 8 + p) * 4
            a("buffer_load_dwordx4 %s, v3, s[20:23], s13 offen offset:%d" % (vr(r), c * 1024))
        if p < 7: a("s_add_u32 s13, s13, 114688")
    acc = 72
    for p in range(8):
        a("s_waitcnt vmcnt(%d)" % (14 - 2 * p))
        for c in range(2):
            r = 8 + (c * 8 + p) * 4
            for j in range(4):
                d = acc + 8 * c + 2 * j
                if p == 0:
                    a("v_lshlrev_b32 v%d, 16, v%d" % (d, r + j)); a("v_and_b32 v%d, 0xffff0000, v%d" % (d + 1, r + j))
                else:
                    a("v_lshlrev_b32 v6, 16, v%d" % (r + j)); a("v_and_b32 v7, 0xffff0000, v%d" % (r + j))
                    a("v_add_f32 v%d, v%d, v6" % (d, d)); a("v_add_f32 v%d, v%d, v7" % (d + 1, d + 1))
    for c in range(2):
        for j in range(4): a("v_cvt_pk_bf16_f32 v%d, v%d, v%d" % (8 + 4 * c + j, acc + 8 * c + 2 * j, acc + 8 * c + 2 * j + 1))
    a("s_nop 1")
    for c in range(2):
        a("v_permlane32_swap_b32 v%d, v%d" % (8 + 4 * c, 10 + 4 * c))
        a("v_permlane32_swap_b32 v%d, v%d" % (9 + 4 * c, 11 + 4 * c))
    for c in range(2):
        a("buffer_store_dwordx4 %s, v4, s[24:27], s15 offen offset:%d" % (vr(8 + 4 * c), 64 * c))
    a.label("L_rexit")
    a("s_endpgm")

def generate(opt, fn):
    a = Asm()
    for l in HEADER.strip().split("\n"): a.lines.append(l)
    a.lines.append("; @launch kernel=main_kernel grid=(256,1,1) block=(256,1,1) lds=%d" % (opt.NS * SLOT))
    if opt.red: a.lines.append("; @launch kernel=red_kernel grid=(448,1,1) block=(256,1,1) lds=0")
    a('.amdgcn_target "amdgcn-amd-amdhsa--gfx950"')
    kernel_begin(a, "main_kernel")
    a("s_cmp_ge_u32 s2, 256")
    a("s_cbranch_scc1 L_exit")
    a("s_load_dwordx8 s[72:79], s[0:1], 0")
    a("s_load_dwordx2 s[80:81], s[0:1], 32")
    a("s_load_dwordx2 s[82:83], s[0:1], 56")
    if opt.stamps:
        a("s_memrealtime s[%d:%d]" % (sST + 16, sST + 17))
    a("v_lshrrev_b32 v2, 6, v0")
    a("v_and_b32 v1, 63, v0")
    a("v_readfirstlane_b32 s%d, v2" % sWAVE)
    if opt.map == 0:
        a("s_and_b32 s84, s2, 3"); a("s_lshl_b32 s84, s84, 1"); a("s_bfe_u32 s85, s2, 0x10003"); a("s_add_u32 s84, s84, s85")
        a("s_bfe_u32 s85, s2, 0x10002"); a("s_lshl_b32 s85, s85, 4"); a("s_lshr_b32 s93, s2, 4"); a("s_add_u32 s85, s85, s93")
        ng = 16
    else:
        a("s_and_b32 s84, s2, 7"); a("s_lshr_b32 s85, s2, 3"); a("s_lshr_b32 s93, s2, 4")
        ng = 16
    a("s_lshl_b32 s86, s85, 3")
    a("s_add_u32 s86, s86, s84")
    a("s_lshl_b32 s87, s86, 19")
    a("s_lshl_b32 s88, s84, 10")
    a("s_mul_i32 s89, s84, %d" % (2 * 229376))
    a("s_mul_i32 s90, s85, 114688")
    a("s_mul_i32 s91, s86, 114688")
    a("v_and_b32 v3, 15, v1")
    a("v_lshl_add_u32 v4, v2, 5, v3")
    a("v_mul_u32_u24 v4, 896, v4")
    a("v_lshrrev_b32 v5, 4, v1")
    a("v_lshl_add_u32 v6, v5, 4, v4")
    a("v_add_u32 v7, %d, v6" % (16 * 896))
    a("v_lshrrev_b32 v10, 5, v1")
    a("v_and_b32 v11, 31, v1")
    a("v_lshlrev_b32 v11, 4, v11")
    a("v_lshl_add_u32 v11, v10, 15, v11")
    a("v_lshl_add_u32 v%d, v2, 16, v11" % vW)
    for p in range(1, 4): a("v_add_u32 v%d, %d, v%d" % (vW + p, p * (8192 - PITCH), vW))
    a("s_mul_i32 s%d, s%d, %d" % (sB1, sWAVE, 4 * PITCH))
    a("v_lshrrev_b32 v8, 3, v0")
    a("s_mul_i32 s92, s93, 28")
    a("v_add_u32 v8, s92, v8")
    a("v_lshlrev_b32 v8, 13, v8")
    a("v_and_b32 v9, 7, v0")
    a("v_lshl_add_u32 v8, v9, 7, v8")
    a("s_getpc_b64 s[%d:%d]" % (sRET, sRET + 1))
    a.label("L_pc")
    a("s_sub_u32 s%d, s%d, L_pc-main_kernel" % (sRET, sRET))
    a("s_subb_u32 s%d, s%d, 0" % (sRET + 1, sRET + 1))
    a("s_lshr_b32 s92, s2, 3")
    a("s_lshl_b32 s92, s92, 12")
    a("v_lshrrev_b32 v9, 3, v0")
    a("v_lshlrev_b32 v9, 7, v9")
    a("v_add_u32 v9, s92, v9")
    a("v_min_u32 v9, L_code_end-main_kernel-4, v9")
    a("v_lshlrev_b32 v5, 4, v1")
    a("v_lshl_add_u32 v%d, v2, 10, v5" % vD)
    for p in range(1, 4): a("v_add_u32 v%d, %d, v%d" % (vD + p, p * (4096 - PITCH), vD))
    a("s_waitcnt lgkmcnt(0)")
    if opt.stamps: a("s_mov_b32 s%d, s%d" % (sST + 7, sST + 16))
    srd_build(a, sX, 72, 90, 114688)
    srd_build(a, sWQ, 78, 88, 0)
    a("s_sub_u32 s%d, %d, s88" % (sWQ + 2, 448 * 8192))
    srd_build(a, sK, 74, 87, 524288)
    g = Gen(opt); g.build()
    L = g.R.lines()
    ib = next(i for i, (k, t) in enumerate(L) if t is not None and t.startswith("v_mov_b32 v%d, 0x3f803f80" % ONES))
    def put(part):
        for k, t in part:
            if k in ("lab", "labpost"): a.label(t)
            else: a.lines.append(t)
    put(L[:ib])
    srd_build(a, sV, 76, 87, 524288)
    srd_build(a, sWOT, 80, 89, 2 * 229376)
    a("s_sub_u32 s%d, s%d, 480" % (sWO, sWOT)); a("s_subb_u32 s%d, s%d, 0" % (sWO + 1, sWOT + 1))
    a("s_mov_b32 s%d, %d" % (sWO + 2, 2 * 229376 + 480)); a("s_mov_b32 s%d, 0x00020000" % (sWO + 3))
    srd_build(a, sO, 82, 91, 114688)
    a("s_and_b32 s92, s%d, 1" % sWAVE); a("s_lshl_b32 s92, s92, 3"); a("s_and_b32 s94, s%d, 2" % sWAVE); a("s_lshl_b32 s94, s94, 1")
    a("s_add_u32 s92, s92, s94"); a("s_mul_i32 s%d, s92, 896" % sWOB)
    a("s_mul_i32 s%d, s93, 28672" % sT1); a("s_lshl_b32 s92, s%d, 13" % sWAVE); a("s_add_u32 s%d, s%d, s92" % (sT1, sT1))
    a("s_mov_b32 s%d, 0x3db8aa3b" % sC)
    a("s_mov_b32 s%d, 0x%x" % (sTHR, struct.unpack("<I", struct.pack("<f", opt.thr))[0]))
    a("v_and_b32 v3, 15, v1")
    a("v_mul_u32_u24 v3, %d, v3" % PITCH)
    a("v_lshrrev_b32 v4, 4, v1")
    a("v_lshl_add_u32 v%d, v4, 4, v3" % vKA[0])
    a("v_lshrrev_b32 v3, 2, v1")
    a("v_mul_u32_u24 v3, %d, v3" % PITCH)
    a("v_and_b32 v4, 1, v1")
    a("v_lshl_add_u32 v3, v4, 4, v3")
    a("v_bfe_u32 v4, v1, 1, 1")
    a("v_lshl_add_u32 v%d, v4, 3, v3" % vTR[0])
    for r in (1, 2):
        a("v_add_u32 v%d, %d, v%d" % (vKA[r], REGB[r], vKA[0]))
        a("v_add_u32 v%d, %d, v%d" % (vTR[r], REGB[r], vTR[0]))
    a("v_lshrrev_b32 v3, 4, v1")
    a("v_lshlrev_b32 v3, 14, v3")
    a("v_bfe_u32 v4, v1, 3, 1")
    a("v_lshl_add_u32 v3, v4, 9, v3")
    a("v_and_b32 v4, 7, v1")
    a("v_lshl_add_u32 v3, v4, 4, v3")
    a("v_sub_u32 v%d, v3, v5" % vDELTA)
    put(L[ib:])
    errs = check_hazards([t for k, t in L if k not in ("lab", "labpost", "cm")], "main")
    print("est cycles", g.R.cost, "hazard errors", errs)
    if opt.stamps:
        a("s_memrealtime s[%d:%d]" % (sST + 16, sST + 17)); a("s_waitcnt lgkmcnt(0)"); a("s_mov_b32 s%d, s%d" % (sST + 9, sST + 16))
    a("v_mbcnt_lo_u32_b32 v%d, -1, 0" % vT2)
    a("v_mbcnt_hi_u32_b32 v%d, -1, v%d" % (vT2, vT2))
    a("v_lshlrev_b32 v%d, 4, v%d" % (vT2, vT2))
    a("s_mul_i32 s%d, s%d, %d" % (sT0, sWAVE, 28 * 1024))
    a("s_nop 3")
    k = 0
    for half in range(2):
        for pr in range(7):
            for qb in range(2):
                tb = 16 * (k % 8); k += 1
                for o in range(2):
                    for r in range(4): a("v_accvgpr_read_b32 v%d, a%d" % (tb + 4 * o + r, OUT(half, 2 * pr + o, qb) + r))
                for i in range(4): a("v_cvt_pk_bf16_f32 v%d, v%d, v%d" % (tb + 8 + i, tb + 2 * i, tb + 2 * i + 1))
                ci = qb * 14 + half * 7 + pr
                a("s_add_u32 s%d, s%d, %d" % (sT1, sT0, ci * 1024))
                a("buffer_store_dwordx4 %s, v%d, %s, s%d offen" % (vr(tb + 8), vT2, sr(sO), sT1))
    if opt.stamps:
        a("s_waitcnt vmcnt(0)")
        a("s_memrealtime s[%d:%d]" % (sST + 16, sST + 17)); a("s_waitcnt lgkmcnt(0)"); a("s_mov_b32 s%d, s%d" % (sST + 10, sST + 16))
        a("s_add_u32 s%d, s82, 0x4000000" % sO); a("s_addc_u32 s%d, s83, 0" % (sO + 1)); a("s_mov_b32 s%d, 0x100000" % (sO + 2))
        a("s_lshl_b32 s%d, s2, 8" % sT0); a("s_lshl_b32 s%d, s%d, 6" % (sT1, sWAVE)); a("s_add_u32 s%d, s%d, s%d" % (sT0, sT0, sT1))
        for i in range(16): a("v_mov_b32 v%d, s%d" % (i, sST + i))
        a("v_mov_b32 v16, 0")
        for i in range(4): a("buffer_store_dwordx4 %s, v16, %s, s%d offen offset:%d" % (vr(4 * i), sr(sO), sT0, 16 * i))
    a.label("L_exit")
    a("s_endpgm")
    a.label("L_code_end")
    rare_code(a, g.rare)
    red_kernel(a)
    kernel_desc(a, "main_kernel", 512, 102, 256)
    kernel_desc(a, "red_kernel", 88, 32, 88)
    if opt.cyc: a.lines = [l.replace("s_memrealtime", "s_memtime") for l in a.lines]
    open(fn, "w").write("\n".join(l.strip() if not l.strip().startswith(".amdhsa_") or l.startswith(".amdhsa_kernel") else l for l in a.lines) + "\n")

if __name__ == "__main__":
    ap = argparse.ArgumentParser()
    ap.add_argument("out")
    ap.add_argument("--set", nargs="*", default=[])
    args = ap.parse_args()
    opt = Opt()
    for kvp in args.set:
        k, v = kvp.split("=")
        cur = getattr(Opt, k)
        setattr(opt, k, type(cur)(int(v)) if isinstance(cur, bool) else type(cur)(v))
    generate(opt, args.out)
```

```python
import sys, re, argparse, struct
from gl import Asm, kernel_begin, kernel_desc
from gen import It, V, E, SC, VM, gap_cost, check_hazards, vr, ar, sr, MF, srd_build

class Opt:
    PD = 6
    NS = 9
    bar2 = False
    stamps = False
    thr = 10.0
    ia = 5
    ib = 4
    maxper = 3
    wtouch = True
    wotouch_step = 16
    xnt = False
    map = 0
    red = True
    dbg = False
    dbgwg = 0
    nodma = False
    cyc = False
    nomf = False
    l2kv = False

PITCH = 1056
SLOT = 16 * PITCH
FR0 = 224
def P(j, qb): return 8 * j + 4 * qb
def Q(s, qb): return 128 + 8 * s + 4 * qb
def S(par, kb, qb): return 192 + 16 * par + 8 * kb + 4 * qb
def NEGM(qb): return 224 + 4 * qb
ONES = 232
vKA = [236, 237, 238]
vTR = [239, 240, 241]
vT0, vT1, vT2, vT3 = 242, 243, 244, 245
vD = 246
vW = 250
vDELTA = 254
vDUM = 255
def OUT(half, nb, qb): return (half * 14 + nb) * 8 + 4 * qb
REGB = [0, 4 * SLOT, 8 * SLOT]

sK, sV, sWQ, sWO, sX, sO = 4, 8, 12, 16, 20, 24
sB1, sT0, sT1, sC, sTHR, sWAVE, sWOB = 28, 29, 30, 31, 32, 33, 34
sRET = 36
sWOT = 40
sST = 48

ORDER = {"ds": 0, "vmw": 1, "bar": 2, "s": 3, "lgw": 3, "lab": 3, "vm": 4, "v": 5, "e": 5, "spost": 9, "labpost": 9}

class Tile:
    def __init__(self, kind, soff): self.kind, self.soff, self.slot = kind, soff, None

class Seg:
    def __init__(self, name, tile):
        self.name, self.tile = name, tile
        self.frags = []; self.mf = []
        self.bar = False; self.vmtags = []
        self.at = {}; self.vq = []; self.sq = []
        self.post = []
        self.dmagaps = None
    def put(self, gap, *items): self.at.setdefault(gap, []).extend(items)

class Emit:
    def __init__(self, opt):
        self.opt = opt; self.trace = []; self.fbase = 0; self.cost = 0
    def out(self, it): self.trace.append(it)
    def raw(self, *items):
        for it in items:
            self.out(it)
            if it.k not in ("lab", "labpost", "cm"): self.cost += 8 if it.k in ("e", "vm", "ds") else 4
    def freg(self, F): return FR0 + 4 * (F % 8)
    def reads_of(self, seg, f, F):
        r = self.freg(F)
        return [It("ds", tpl(r), ("f", F)) for tpl in seg.frags[f]]
    def head_reads(self, nxt, Fn):
        L = []
        if nxt is None: return L
        if nxt.bar: L.append((0, It("sync", None, nxt.vmtags)))
        for f in range(self.opt.PD):
            for it in self.reads_of(nxt, f, Fn + f): L.append((f, it))
        return L
    def prime(self, nxt):
        for f, it in self.head_reads(nxt, self.fbase):
            if it.k == "sync": self.raw(It("vmw", None, it.tag), It("bar", "s_barrier"))
            else: self.raw(it)
        self.raw(It("lgw", None, ("f", self.fbase + 1)))
    def seg(self, seg, nxt):
        PD = self.opt.PD
        nf = len(seg.frags); n = len(seg.mf); F0 = self.fbase
        assert nf % 2 == 0
        rq = []
        for f in range(PD, nf):
            for it in self.reads_of(seg, f, F0 + f): rq.append((f, it))
        for f, it in self.head_reads(nxt, F0 + nf): rq.append((nf + f, it))
        gaps = [[] for _ in range(n)]
        cf = -1
        for i in range(n):
            if seg.mf[i][0] is not None: cf = seg.mf[i][0]
            want = 99 if i == n - 1 else 1
            while rq and want > 0 and (rq[0][0] <= cf + PD or i == n - 1):
                f, it = rq.pop(0)
                assert it.k == "ds"
                gaps[i].append(it); want -= 1
                if rq and rq[0][1].k == "sync":
                    _, sy = rq.pop(0)
                    gaps[i].append(It("vmw", None, sy.tag)); gaps[i].append(It("bar", "s_barrier"))
                    break
            if i + 1 < n:
                fn = seg.mf[i + 1][0]
                if fn is not None and fn != cf and fn % 2 == 0 and fn > 0: gaps[i].append(It("lgw", None, ("f", F0 + fn + 1)))
            elif nxt is not None:
                gaps[i].append(It("lgw", None, ("f", F0 + nf + 1)))
        assert not rq
        if seg.bar and self.opt.bar2: gaps[0].append(It("bar", "s_barrier"))
        for g, items in seg.at.items(): gaps[g if g >= 0 else n + g].extend(items)
        def extra(g, it): return gap_cost(gaps[g] + [it]) - max(16, gap_cost(gaps[g]))
        def place(q):
            q = list(q)
            if not q: return
            for L in range(0, 400, 4):
                for start_over in range(n, -1, -1) if L else [0]:
                    tmp = {}; g = 0; ok = True
                    for it in q:
                        g = max(g, it.lo); hi = min(it.hi, n - 1)
                        while True:
                            if g > hi: ok = False; break
                            base = gaps[g] + tmp.get(g, [])
                            lim = max(16, gap_cost(gaps[g])) + (L if g >= start_over else max(0, L - 4))
                            if gap_cost(base + [it]) <= lim:
                                tmp.setdefault(g, []).append(it); break
                            g += 1
                        if not ok: break
                    if ok:
                        for g, its in tmp.items(): gaps[g].extend(its)
                        return
            raise AssertionError("cannot place in " + seg.name)
        place(seg.sq); place(seg.vq)
        self.out(It("cm", "; " + seg.name))
        for i in range(n):
            f, tpl = seg.mf[i]
            self.out(It("m", tpl.replace("{A}", ar(self.freg(F0 + f)) if f is not None else "")))
            items = sorted(gaps[i], key=lambda x: ORDER[x.k])
            self.cost += gap_cost([x for x in items])
            for it in items: self.out(it)
        self.fbase += nf
        self.raw(*seg.post)
    def lines(self):
        cnt = {"ds": 0, "vm": 0}; last = {}; L = []; started = False
        for it in self.trace:
            if it.k == "m": started = True
            if started and self.opt.nodma and it.k in ("vm", "vmw"): continue
            if started and self.opt.nomf and (it.k in ("m", "ds", "e", "lgw") or (it.k == "v" and not re.match(r"v_(add|sub|mbcnt|lshr|lshl|and|min|mul)\w*_[ub]32\S* v2[45]\d", it.t)) or (it.t or "").startswith("s_cbranch_vcc")): continue
            if it.k in ("ds", "vm"):
                cnt[it.k] += 1
                if it.tag is not None: last[it.tag] = cnt[it.k]
                L.append((it.k, it.t))
            elif it.k == "lgw":
                L.append(("s", "s_waitcnt lgkmcnt(%d)" % min(15, cnt["ds"] - last[it.tag])))
            elif it.k == "vmw":
                n = min(cnt["vm"] - last[tg] for tg in it.tag)
                L.append(("s", "s_waitcnt vmcnt(%d)" % min(63, n)))
            else: L.append((it.k, it.t))
        return L

def lds_addr(regs, tile, inner):
    off = tile.slot * SLOT
    r = 0 if tile.slot < 4 else 1 if tile.slot < 8 else 2
    return regs[r], off - REGB[r] + inner
def trpair(tile, o0, o1):
    def mk(o, d):
        def f(r):
            v, off = lds_addr(vTR, tile, o)
            return "ds_read_b64_tr_b16 %s, v%d offset:%d" % (ar(r + d, 2), v, off)
        return f
    return [mk(o0, 0), mk(o1, 2)]

class Gen:
    def __init__(self, opt):
        self.opt = opt; self.R = Emit(opt); self.rare = []
        self.kvpat = "k"; self.wpat = "wq"
    def xreg(self, phase, s, qb):
        if s >= 2: return ar(128 + 8 * (s - 2) + 4 * qb)
        if s == 0 or phase == "A": return vr(208 + 8 * s + 4 * qb)
        return vr(120 + 4 * qb)
    def qp_seg(self, ph, j, tile):
        s = Seg("%s qp%d" % (ph, j), tile)
        for db in range(16):
            s.frags.append(trpair(tile, db * 32, db * 32 + 512))
            for qb in range(2):
                d = (vr if ph == "A" else ar)(8 * db + 4 * qb)
                s.mf.append((db, "%s %s, {A}, %s, %s" % (MF, d, self.xreg(ph, j, qb), "0" if j == 0 else d)))
        if ph == "A": s.xtag = ("x", j)
        return s
    def sm_ops(self, j):
        par = j & 1; ex = []; cv = []
        for kb in range(2):
            for qb in range(2):
                for hlf in range(2):
                    b = S(par, kb, qb) + 2 * hlf
                    ex += ["v_exp_f32 v%d, v%d" % (b, b), "v_exp_f32 v%d, v%d" % (b + 1, b + 1)]
                    cv.append("v_cvt_pk_bf16_f32 v%d, v%d, v%d" % (P(j, qb) + 2 * kb + hlf, b, b + 1))
        return ex, cv
    def max_ops(self, j):
        a = [S(j & 1, 0, 0) + r for r in range(16)]
        L = ["v_max3_f32 v%d, v%d, v%d, v%d" % (vT0, a[0], a[1], a[2])]
        for i in range(3, 15, 2): L.append("v_max3_f32 v%d, v%d, v%d, v%d" % (vT0, vT0, a[i], a[i + 1]))
        L.append("v_max_f32 v%d, v%d, v%d" % (vT0, vT0, a[15]))
        L.append("v_cmp_lt_f32 vcc, s%d, v%d" % (sTHR, vT0))
        return L[:3], L[3:]
    def rare_branch(self, ph, j, post=True):
        self.rare.append((ph, j))
        return [It("spost" if post else "s", "s_cbranch_vccnz L_rs%s%d" % (ph, j)), It("labpost" if post else "lab", "L_rb%s%d" % (ph, j))]
    def init_ops(self):
        q = []; t = [vT0, vT1]; u = [vT2, vT3]
        for k in range(4):
            for qb in range(2):
                r = [S(0, kb, qb) + i for kb in range(2) for i in range(4)]
                if k == 0: q.append("v_max3_f32 v%d, v%d, v%d, v%d" % (t[qb], r[0], r[1], r[2]))
                elif k < 3: q.append("v_max3_f32 v%d, v%d, v%d, v%d" % (t[qb], t[qb], r[2 * k + 1], r[2 * k + 2]))
                else: q.append("v_max_f32 v%d, v%d, v%d" % (t[qb], t[qb], r[7]))
        for sw in ("32", "16"):
            for qb in range(2): q.append("v_mov_b32 v%d, v%d" % (u[qb], t[qb]))
            q.append("v_nop")
            for qb in range(2): q.append("v_permlane%s_swap_b32 v%d, v%d" % (sw, t[qb], u[qb]))
            for qb in range(2): q.append("v_max_f32 v%d, v%d, v%d" % (t[qb], t[qb], u[qb]))
        for qb in range(2):
            for r in range(4): q.append("v_sub_f32 v%d, 0, v%d" % (NEGM(qb) + r, t[qb]))
        for kb in range(2):
            for qb in range(2):
                for r in range(4): q.append("v_sub_f32 v%d, v%d, v%d" % (S(0, kb, qb) + r, S(0, kb, qb) + r, t[qb]))
        return q
    def qk_seg(self, ph, m, tile):
        par = m & 1
        s = Seg("%s qk%d" % (ph, m), tile)
        for kb in range(2):
            for ks in range(8):
                def f(r, o=kb * 512 + ks * 64):
                    v, off = lds_addr(vKA, tile, o)
                    return "ds_read_b128 %s, v%d offset:%d" % (ar(r), v, off)
                s.frags.append([f])
                for qb in range(2):
                    d = vr(S(par, kb, qb))
                    c = d if ks else ("0" if m == 0 else vr(NEGM(qb)))
                    s.mf.append((kb * 8 + ks, "%s %s, {A}, %s, %s" % (MF, d, vr(Q(ks, qb)), c)))
        if m >= 1:
            ex, cv = self.sm_ops(m - 1)
            for i in range(16): s.put(2 * i + 1, E(ex[i]))
            for k in range(7): s.put(4 * k + 4, V(cv[k]))
            m0, m1 = self.max_ops(m)
            for t, g in zip(m0, (22, 26, 30)): s.put(g, V(t))
        s.dmagaps = [2, 6, 10, 14, 18]
        return s
    def after_qk(self, ph, m, qk, pj):
        q = []
        if m >= 1: q.append(V(self.sm_ops(m - 1)[1][7]))
        if m == 0:
            pj.vq += [V(t, lo=3, hi=len(pj.mf) - 2) for t in self.init_ops()]
            return
        m0, m1 = self.max_ops(m)
        if pj is not None:
            pj.vq += q + [V(t, lo=3) for t in m1]
            for it in self.rare_branch(ph, m): pj.put(-1, it)
        else:
            qk.post += [SC("s_nop 0")] + q + [SC("s_nop 3")] + [V(t) for t in m1] + self.rare_branch(ph, m, False)
    def pv_seg(self, ph, c, t, tile, oacc, ll):
        s = Seg("%s pv%d.%d" % (ph, c, t), tile)
        for k in range(4):
            j = 4 * t + k
            if c == 0:
                for qb in range(2):
                    d = vr(ll(qb))
                    s.mf.append((None, "%s %s, %s, %s, %s" % (MF, d, vr(ONES), vr(P(j, qb)), "0" if j == 0 else d)))
            for db in range(4):
                s.frags.append(trpair(tile, 2 * k * 128 + db * 32, (2 * k + 1) * 128 + db * 32))
                for qb in range(2):
                    d = vr(oacc(db, qb))
                    s.mf.append((4 * k + db, "%s %s, {A}, %s, %s" % (MF, d, vr(P(j, qb)), "0" if j == 0 else d)))
        return s
    def op_seg(self, ph, i, tile, obf, zero):
        half = i & 1
        s = Seg("%s op%d" % (ph, i), tile)
        for nb in range(14):
            s.frags.append(trpair(tile, nb * 32, nb * 32 + 512))
            for qb in range(2):
                d = ar(OUT(half, nb, qb))
                s.mf.append((nb, "%s %s, {A}, %s, %s" % (MF, d, vr(obf(qb)), "0" if zero else d)))
        return s
    def norm_ops(self, u, oacc, dst, rl):
        q = []
        for o in range(2):
            for qb in range(2):
                b = oacc(2 * u + o, qb)
                for r in range(4): q.append("v_mul_f32 v%d, v%d, v%d" % (b + r, b + r, rl(qb)))
                for hlf in range(2): q.append("v_cvt_pk_bf16_f32 v%d, v%d, v%d" % (dst(qb) + 2 * o + hlf, b + 2 * hlf, b + 2 * hlf + 1))
        return q
    def dma(self, tile):
        pre = []
        if tile.kind in "kv":
            if tile.kind != self.kvpat:
                op = "v_add_u32" if tile.kind == "v" else "v_sub_u32"
                pre += [V("%s v%d, v%d, v%d" % (op, vD + p, vD + p, vDELTA)) for p in range(4)]
                self.kvpat = tile.kind
            vb, srd, nt = vD, (sK if tile.kind == "k" else sV), " nt"
        else:
            if tile.kind != self.wpat:
                w = vW
                pre += [V("v_mbcnt_lo_u32_b32 v%d, -1, 0" % w), V("v_mbcnt_hi_u32_b32 v%d, -1, v%d" % (w, w)),
                        V("v_lshrrev_b32 v%d, 5, v%d" % (w + 1, w)), V("v_and_b32 v%d, 31, v%d" % (w + 2, w)), V("v_min_u32 v%d, 27, v%d" % (w + 2, w + 2)),
                        V("v_mul_u32_u24 v%d, %d, v%d" % (w + 1, 16 * 896, w + 1)), V("v_lshl_add_u32 v%d, v%d, 4, v%d" % (w + 3, w + 2, w + 1)),
                        V("v_add_u32 v%d, s%d, v%d" % (w + 3, sWOB, w + 3))]
                pre += [V("v_add_u32 v%d, %d, v%d" % (w + p, 480 - 160 * p, w + 3)) for p in range(3)]
                self.wpat = tile.kind
            vb, srd, nt = vW, (sWQ if tile.kind == "wq" else sWO), ""
        pre += [SC("s_add_u32 m0, s%d, %d" % (sB1, tile.slot * SLOT)), SC("s_mov_b32 s%d, %d" % (sT0, tile.soff))]
        return (pre, [VM("buffer_load_dwordx4 v%d, %s, s%d offen offset:%d%s lds" % (vb + p, sr(srd), sT0, p * PITCH, nt), ("t", id(tile))) for p in range(4)])
    def spread(self, segs, G):
        nvm = sum(len(v) for _, v in G)
        if not nvm: return
        cand = []
        for s in segs:
            gl_ = s.dmagaps if s.dmagaps is not None else list(range(1, len(s.mf) - 1))
            cand += [(s, g) for g in gl_]
        if nvm > len(cand):
            cand = [(s, g) for s in segs for g in range(2, len(s.mf) - 1, 2)]
        assert nvm <= len(cand), (segs[0].name, nvm)
        k = 0; last = None
        for pre, vms in G:
            s, g = cand[k * len(cand) // nvm]
            same = last == (s, g - 1)
            for x in pre:
                s.put(g - 1, It("spost", x.t) if (same and x.k == "s") else x)
            for vm in vms:
                s, g = cand[k * len(cand) // nvm]
                s.put(g, vm); k += 1; last = (s, g)
    def stamp(self, k):
        if not self.opt.stamps: return []
        return [SC("s_memrealtime s[%d:%d]" % (sST + 16, sST + 17)), SC("s_waitcnt lgkmcnt(0)"), SC("s_mov_b32 s%d, s%d" % (sST + k, sST + 16))]

    def build(self):
        opt = self.opt; R = self.R
        wq = [[Tile("wq", h * 512 + j * 32 * 8192) for j in range(14)] for h in range(2)]
        wo = [[Tile("wo", h * 229376 + (i >> 1) * 32 * 896 + (i & 1) * 448) for i in range(16)] for h in range(2)]
        kt = [[Tile("k", h * 262144 + m * 16384) for m in range(16)] for h in range(2)]
        vt = [[Tile("v", h * 262144 + (n & 3) * 65536 + (n >> 2) * 128) for n in range(16)] for h in range(2)]
        if opt.l2kv:
            for t in kt[0] + kt[1] + vt[0] + vt[1]: t.soff &= 0xffff if t.kind == "k" else 0x1ff
        steps = []
        for j in range(14): steps.append([self.qp_seg("A", j, wq[0][j])])
        lastA = steps[-1][0]
        cvq = []
        for ks in range(8):
            for qb in range(2):
                for o in range(2):
                    b = 8 * (2 * ks + o) + 4 * qb
                    cvq += [V("v_mul_f32 v%d, s%d, v%d" % (b + r, sC, b + r)) for r in range(4)]
            for qb in range(2):
                for o in range(2):
                    b = 8 * (2 * ks + o) + 4 * qb
                    cvq += [V("v_cvt_pk_bf16_f32 v%d, v%d, v%d" % (Q(ks, qb) + 2 * o + hlf, b + 2 * hlf, b + 2 * hlf + 1)) for hlf in range(2)]
            cvq += [V("v_permlane32_swap_b32 v%d, v%d" % (Q(ks, qb) + i, Q(ks, qb) + 2 + i)) for qb in range(2) for i in range(2)]
        lastA.post += self.stamp(1) + cvq + self.stamp(2)
        for m in range(16):
            qk = self.qk_seg("B", m, kt[0][m])
            pj = self.qp_seg("B", m, wq[1][m]) if m < 14 else None
            if m == 0: qk.vq += [V("v_mov_b32 v%d, v%d" % (120 + i, 216 + i)) for i in range(8)]
            self.after_qk("B", m, qk, pj)
            steps.append([qk] + ([pj] if pj else []))
        ex, cv = self.sm_ops(15)
        tail = []
        for k in range(8): tail += [E(ex[2 * k]), E(ex[2 * k + 1])] + ([V(cv[k - 1])] if k else [])
        steps[-1][-1].post += tail + [SC("s_nop 0"), V(cv[7])] + self.stamp(3)
        oc = lambda db, qb: 192 + 8 * db + 4 * qb
        rlc = lambda qb: vT0 + qb
        q2 = []
        for ks in range(8):
            for qb in range(2):
                for o in range(2):
                    for hlf in range(2):
                        b = 8 * (2 * ks + o) + 4 * qb + 2 * hlf
                        q2 += [V("v_accvgpr_read_b32 v%d, a%d" % (vT2, b)), V("v_accvgpr_read_b32 v%d, a%d" % (vT3, b + 1)),
                               V("v_mul_f32 v%d, s%d, v%d" % (vT2, sC, vT2)), V("v_mul_f32 v%d, s%d, v%d" % (vT3, sC, vT3)),
                               V("v_cvt_pk_bf16_f32 v%d, v%d, v%d" % (Q(ks, qb) + 2 * o + hlf, vT2, vT3))]
                if qb == 1:
                    q2 += [V("v_permlane32_swap_b32 v%d, v%d" % (Q(ks, 0) + i, Q(ks, 0) + 2 + i)) for i in range(2)]
                    q2 += [V("v_permlane32_swap_b32 v%d, v%d" % (Q(ks, 1) + i, Q(ks, 1) + 2 + i)) for i in range(2)]
        for n in range(16):
            c, t = n >> 2, n & 3
            s = self.pv_seg("C", c, t, vt[0][n], oc, NEGM)
            s.vq += q2[22 * n: 22 * n + 22]
            if n == 3: s.vq += [E("v_rcp_f32 v%d, v%d" % (rlc(qb), NEGM(qb)), lo=36) for qb in range(2)]
            if t == 3:
                post = []
                for u in range(2):
                    if c < 3:
                        dst = lambda qb, u=u: oc(2 * u, qb)
                        ops = self.norm_ops(u, oc, dst, rlc)
                        post += [V(x) for x in ops]
                        post += [V("v_accvgpr_write_b32 a%d, v%d" % (128 + 8 * (2 * c + u) + 4 * qb + r, dst(qb) + r)) for qb in range(2) for r in range(4)]
                    else:
                        post += [V(x) for x in self.norm_ops(u, oc, lambda qb, u=u: P(14 + u, qb), rlc)]
                s.post += post
            steps.append([s])
        steps[-1][-1].post += self.stamp(4)
        for m in range(16):
            qk = self.qk_seg("D", m, kt[1][m])
            pj = self.op_seg("D", m, wo[0][m], lambda qb, u=m >> 1: P(8 + u, qb), m < 2)
            if m == 0: qk.vq += [V("v_accvgpr_read_b32 v%d, a%d" % (64 + i, 128 + i), hi=30) for i in range(48)]
            self.after_qk("D", m, qk, pj)
            steps.append([qk, pj])
        steps[-1][-1].post += self.stamp(5)
        oe = lambda db, qb: 128 + 8 * db + 4 * qb
        obf = lambda u: (lambda qb: 160 + 8 * u + 4 * qb)
        lle = lambda qb: 176 + 4 * qb
        rle = lambda qb: 188 + qb
        ex, cv = self.sm_ops(15)
        for t in range(4):
            s = self.pv_seg("E", 0, t, vt[1][t], oe, lle)
            if t < 2:
                for k in range(4 * t, 4 * t + 4): s.vq += [E(ex[2 * k]), E(ex[2 * k + 1])] + ([V(cv[k - 1])] if k else [])
            if t == 2: s.vq += [V(cv[7])]
            if t == 3:
                s.vq += [E("v_rcp_f32 v%d, v%d" % (rle(qb), lle(qb)), lo=36) for qb in range(2)]
                s.post += [V(x) for x in self.norm_ops(0, oe, obf(0), rle)] + [SC("s_nop 1")] + self.stamp(6)
            steps.append([s])
        for c in range(1, 4):
            for t in range(4):
                i = 4 * (c - 1) + t
                op = self.op_seg("E", i, wo[1][i], obf((i >> 1) & 1), False)
                pv = self.pv_seg("E", c, t, vt[1][4 * c + t], oe, lle)
                if t == 0: op.vq += [V(x) for x in self.norm_ops(1, oe, obf(1), rle)]; op.dmagaps = []
                if t == 3: op.vq += [V(x, lo=1, hi=26) for x in self.norm_ops(0, oe, obf(0), rle)]; op.dmagaps = []
                steps.append([op, pv] if t == 0 else [pv, op])
        steps[-1][-1].post += self.stamp(8)
        for i in range(12, 16):
            op = self.op_seg("E", i, wo[1][i], obf((i >> 1) & 1), False)
            if i == 12: op.vq += [V(x) for x in self.norm_ops(1, oe, obf(1), rle)]
            steps.append([op])
        cons = [s.tile for st in steps for s in st]
        early = kt[0][:opt.ib]
        order = cons[:opt.ia] + early + [t for t in cons[opt.ia:] if t not in early]
        free = list(range(opt.NS)); ptr = 0; reqstep = {}
        pro = []
        while free:
            order[ptr].slot = free.pop(0); pro.append(order[ptr]); reqstep[id(order[ptr])] = -2; ptr += 1
        issue = []
        for si, st in enumerate(steps):
            if si > 0: free += [s.tile.slot for s in steps[si - 1]]
            L = []
            while free and ptr < len(order) and len(L) < opt.maxper:
                order[ptr].slot = free.pop(0); L.append(order[ptr]); reqstep[id(order[ptr])] = si; ptr += 1
            issue.append(L)
            for s in st: assert reqstep[id(s.tile)] <= si - 2, (s.name, si, reqstep[id(s.tile)])
            st[0].bar = True; st[0].vmtags = [("t", id(s.tile)) for s in st] + [s.xtag for s in st if hasattr(s, "xtag")]
        xn = " nt" if opt.xnt else ""
        def xload(s):
            return [VM("buffer_load_dwordx4 %s, v%d, %s, 0 offen offset:%d%s" % (self.xreg("A", s, qb), 6 + qb, sr(sX), 64 * s, xn), ("x", s)) for qb in range(2)]
        def issue_now(t):
            pre, vms = self.dma(t); R.raw(*pre); R.raw(*vms)
        R.raw(*xload(0)); R.raw(*xload(1))
        issue_now(pro[0])
        if opt.wtouch:
            R.raw(VM("buffer_load_dword v%d, v8, %s, 0 offen" % (vDUM, sr(sWQ))))
        R.raw(VM("global_load_dword v%d, v9, s[%d:%d]" % (vDUM, sRET, sRET + 1)))
        nx = 2
        for k, t in enumerate(pro[1:]):
            issue_now(t)
            if nx < 14:
                R.raw(*xload(nx)); R.raw(*xload(nx + 1)); nx += 2
            if k == 5: R.raw(SC("s_waitcnt vmcnt(40)"))
        assert nx >= 14
        for r in range(4): R.raw(V("v_mov_b32 v%d, 0x3f803f80" % (ONES + r)))
        for si, st in enumerate(steps):
            G = [self.dma(t) for t in issue[si]]
            if opt.wtouch and si == opt.wotouch_step:
                G.append(([V("v_mbcnt_lo_u32_b32 v%d, -1, 0" % vDUM), V("v_mbcnt_hi_u32_b32 v%d, -1, v%d" % (vDUM, vDUM)), V("v_lshlrev_b32 v%d, 7, v%d" % (vDUM, vDUM))],
                          [VM("buffer_load_dword v%d, v%d, %s, s%d offen" % (vDUM, vDUM, sr(sWOT), sT1))]))
            self.spread(st, G)
        flat = [s for st in steps for s in st]
        R.prime(flat[0]); R.raw(*self.stamp(0))
        for k, s in enumerate(flat):
            R.seg(s, flat[k + 1] if k + 1 < len(flat) else None)

def rare_code(a, sites):
    for (ph, j) in sites:
        a.label("L_rs%s%d" % (ph, j))
        a("s_call_b64 s[%d:%d], L_rare%d" % (sRET, sRET + 1, j & 1))
        a("s_call_b64 s[%d:%d], L_scale%d" % (sRET, sRET + 1, j - 1))
        a("s_branch L_rb%s%d" % (ph, j))
    t = [vT0, vT1]; u = [vT2, vT3]
    for par in range(2):
        a.label("L_rare%d" % par)
        for qb in range(2):
            r = [S(par, kb, qb) + i for kb in range(2) for i in range(4)]
            a("v_max3_f32 v%d, v%d, v%d, v%d" % (t[qb], r[0], r[1], r[2]))
            a("v_max3_f32 v%d, v%d, v%d, v%d" % (t[qb], t[qb], r[3], r[4]))
            a("v_max3_f32 v%d, v%d, v%d, v%d" % (t[qb], t[qb], r[5], r[6]))
            a("v_max_f32 v%d, v%d, v%d" % (t[qb], t[qb], r[7]))
        for sw in ("32", "16"):
            for qb in range(2): a("v_mov_b32 v%d, v%d" % (u[qb], t[qb]))
            a("s_nop 1")
            for qb in range(2): a("v_permlane%s_swap_b32 v%d, v%d" % (sw, t[qb], u[qb]))
            for qb in range(2): a("v_max_f32 v%d, v%d, v%d" % (t[qb], t[qb], u[qb]))
        for qb in range(2):
            a("v_ceil_f32 v%d, v%d" % (t[qb], t[qb]))
            a("v_max_f32 v%d, 0, v%d" % (t[qb], t[qb]))
            for r in range(4): a("v_sub_f32 v%d, v%d, v%d" % (NEGM(qb) + r, NEGM(qb) + r, t[qb]))
            for kb in range(2):
                for r in range(4): a("v_sub_f32 v%d, v%d, v%d" % (S(par, kb, qb) + r, S(par, kb, qb) + r, t[qb]))
            a("v_min_f32 v%d, 0x437f0000, v%d" % (u[qb], t[qb]))
            a("v_cvt_u32_f32 v%d, v%d" % (u[qb], u[qb]))
            a("v_mul_u32_u24 v%d, 0x800080, v%d" % (u[qb], u[qb]))
        a("s_setpc_b64 s[%d:%d]" % (sRET, sRET + 1))
    for j in range(14, -1, -1):
        a.label("L_scale%d" % j)
        for qb in range(2):
            for r in range(4): a("v_pk_sub_u16 v%d, v%d, v%d clamp" % (P(j, qb) + r, P(j, qb) + r, u[qb]))
    a("s_nop 1")
    a("s_setpc_b64 s[%d:%d]" % (sRET, sRET + 1))

HEADER = """; Fused MHA block: out = softmax((x Wq) K^T / 16) V Wo   (B=32, Sq=128, D=448, H=16, Sk=512, Dh=256)
"""

def red_kernel(a, opt):
    kernel_begin(a, "red_kernel")
    if opt.dbg: a("s_memrealtime s[28:29]")
    a("s_cmp_ge_u32 s2, 448")
    a("s_cbranch_scc1 L_rexit")
    a("s_load_dwordx2 s[4:5], s[0:1], 56")
    a("s_load_dwordx2 s[6:7], s[0:1], 40")
    a("v_lshrrev_b32 v2, 6, v0")
    a("v_and_b32 v1, 63, v0")
    a("v_readfirstlane_b32 s3, v2")
    a("s_lshl_b32 s8, s2, 2")
    a("s_add_u32 s8, s8, s3")
    a("s_mul_i32 s9, s8, 18725")
    a("s_lshr_b32 s9, s9, 20")
    a("s_mul_i32 s10, s9, 56")
    a("s_sub_u32 s10, s8, s10")
    a("s_mul_i32 s11, s10, 37")
    a("s_lshr_b32 s11, s11, 8")
    a("s_mul_i32 s12, s11, 7")
    a("s_sub_u32 s12, s10, s12")
    a("s_mul_i32 s13, s9, %d" % (8 * 114688))
    a("s_lshl_b32 s14, s10, 11")
    a("s_add_u32 s13, s13, s14")
    a("s_mul_i32 s15, s9, 114688")
    a("s_mul_i32 s16, s11, %d" % (16 * 896))
    a("s_add_u32 s15, s15, s16")
    a("s_lshl_b32 s16, s12, 7")
    a("s_add_u32 s15, s15, s16")
    a("v_lshlrev_b32 v3, 4, v1")
    a("v_and_b32 v4, 15, v1")
    a("v_mul_u32_u24 v4, 896, v4")
    a("v_lshrrev_b32 v5, 4, v1")
    a("v_lshl_add_u32 v4, v5, 4, v4")
    a("s_waitcnt lgkmcnt(0)")
    a("s_mov_b32 s20, s4"); a("s_mov_b32 s21, s5"); a("s_mov_b32 s22, %d" % (256 * 114688)); a("s_mov_b32 s23, 0x00020000")
    a("s_mov_b32 s24, s6"); a("s_mov_b32 s25, s7"); a("s_mov_b32 s26, %d" % (32 * 114688)); a("s_mov_b32 s27, 0x00020000")
    for p in range(8):
        for c in range(2):
            r = 8 + (c * 8 + p) * 4
            a("buffer_load_dwordx4 %s, v3, s[20:23], s13 offen offset:%d" % (vr(r), c * 1024))
        if p < 7: a("s_add_u32 s13, s13, 114688")
    acc = 72
    for p in range(8):
        a("s_waitcnt vmcnt(%d)" % (14 - 2 * p))
        for c in range(2):
            r = 8 + (c * 8 + p) * 4
            for j in range(4):
                d = acc + 8 * c + 2 * j
                if p == 0:
                    a("v_lshlrev_b32 v%d, 16, v%d" % (d, r + j)); a("v_and_b32 v%d, 0xffff0000, v%d" % (d + 1, r + j))
                else:
                    a("v_lshlrev_b32 v6, 16, v%d" % (r + j)); a("v_and_b32 v7, 0xffff0000, v%d" % (r + j))
                    a("v_add_f32 v%d, v%d, v6" % (d, d)); a("v_add_f32 v%d, v%d, v7" % (d + 1, d + 1))
    for c in range(2):
        for j in range(4): a("v_cvt_pk_bf16_f32 v%d, v%d, v%d" % (8 + 4 * c + j, acc + 8 * c + 2 * j, acc + 8 * c + 2 * j + 1))
    a("s_nop 1")
    for c in range(2):
        a("v_permlane32_swap_b32 v%d, v%d" % (8 + 4 * c, 10 + 4 * c))
        a("v_permlane32_swap_b32 v%d, v%d" % (9 + 4 * c, 11 + 4 * c))
    for c in range(2):
        a("buffer_store_dwordx4 %s, v4, s[24:27], s15 offen offset:%d" % (vr(8 + 4 * c), 64 * c))
    if opt.dbg:
        a("s_waitcnt vmcnt(0)")
        a("s_memrealtime s[30:31]")
        a("s_load_dwordx2 s[4:5], s[0:1], 48"); a("s_waitcnt lgkmcnt(0)")
        a("s_sub_u32 s20, s4, 512"); a("s_subb_u32 s21, s5, 0"); a("s_mov_b32 s22, 64")
        a("s_sub_u32 s28, 0, s28")
        a("v_mov_b32 v8, s28"); a("v_mov_b32 v9, s30"); a("v_mov_b32 v10, 0")
        a("buffer_atomic_umax v8, v10, s[20:23], 0 offen offset:48")
        a("buffer_atomic_umax v9, v10, s[20:23], 0 offen offset:52")
    a.label("L_rexit")
    a("s_endpgm")

def generate(opt, fn):
    a = Asm()
    for l in HEADER.strip().split("\n"): a.lines.append(l)
    a.lines.append("; @launch kernel=main_kernel grid=(256,1,1) block=(256,1,1) lds=%d" % (opt.NS * SLOT))
    if opt.red: a.lines.append("; @launch kernel=red_kernel grid=(448,1,1) block=(256,1,1) lds=0")
    a('.amdgcn_target "amdgcn-amd-amdhsa--gfx950"')
    kernel_begin(a, "main_kernel")
    a("s_cmp_ge_u32 s2, 256")
    a("s_cbranch_scc1 L_exit")
    a("s_load_dwordx8 s[72:79], s[0:1], 0")
    a("s_load_dwordx2 s[80:81], s[0:1], 32")
    a("s_load_dwordx2 s[82:83], s[0:1], 56")
    if opt.stamps:
        a("s_memrealtime s[%d:%d]" % (sST + 16, sST + 17))
    a("v_lshrrev_b32 v2, 6, v0")
    a("v_and_b32 v1, 63, v0")
    a("v_readfirstlane_b32 s%d, v2" % sWAVE)
    if opt.map == 0:
        a("s_and_b32 s84, s2, 3"); a("s_lshl_b32 s84, s84, 1"); a("s_bfe_u32 s85, s2, 0x10003"); a("s_add_u32 s84, s84, s85")
        a("s_bfe_u32 s85, s2, 0x10002"); a("s_lshl_b32 s85, s85, 4"); a("s_lshr_b32 s93, s2, 4"); a("s_add_u32 s85, s85, s93")
        ng = 16
    else:
        a("s_and_b32 s84, s2, 7"); a("s_lshr_b32 s85, s2, 3"); a("s_lshr_b32 s93, s2, 4")
        ng = 16
    a("s_lshl_b32 s86, s85, 3")
    a("s_add_u32 s86, s86, s84")
    a("s_lshl_b32 s87, s86, 19")
    a("s_lshl_b32 s88, s84, 10")
    a("s_mul_i32 s89, s84, %d" % (2 * 229376))
    a("s_mul_i32 s90, s85, 114688")
    a("s_mul_i32 s91, s86, 114688")
    a("v_and_b32 v3, 15, v1")
    a("v_lshl_add_u32 v4, v2, 5, v3")
    a("v_mul_u32_u24 v4, 896, v4")
    a("v_lshrrev_b32 v5, 4, v1")
    a("v_lshl_add_u32 v6, v5, 4, v4")
    a("v_add_u32 v7, %d, v6" % (16 * 896))
    a("v_lshrrev_b32 v10, 5, v1")
    a("v_and_b32 v11, 31, v1")
    a("v_lshlrev_b32 v11, 4, v11")
    a("v_lshl_add_u32 v11, v10, 15, v11")
    a("v_lshl_add_u32 v%d, v2, 16, v11" % vW)
    for p in range(1, 4): a("v_add_u32 v%d, %d, v%d" % (vW + p, p * (8192 - PITCH), vW))
    a("s_mul_i32 s%d, s%d, %d" % (sB1, sWAVE, 4 * PITCH))
    a("v_lshrrev_b32 v8, 3, v0")
    a("s_mul_i32 s92, s93, 28")
    a("v_add_u32 v8, s92, v8")
    a("v_lshlrev_b32 v8, 13, v8")
    a("v_and_b32 v9, 7, v0")
    a("v_lshl_add_u32 v8, v9, 7, v8")
    a("s_getpc_b64 s[%d:%d]" % (sRET, sRET + 1))
    a.label("L_pc")
    a("s_sub_u32 s%d, s%d, L_pc-main_kernel" % (sRET, sRET))
    a("s_subb_u32 s%d, s%d, 0" % (sRET + 1, sRET + 1))
    a("s_lshr_b32 s92, s2, 3")
    a("s_lshl_b32 s92, s92, 12")
    a("v_lshrrev_b32 v9, 3, v0")
    a("v_lshlrev_b32 v9, 7, v9")
    a("v_add_u32 v9, s92, v9")
    a("v_min_u32 v9, L_code_end-main_kernel-4, v9")
    a("v_lshlrev_b32 v5, 4, v1")
    a("v_lshl_add_u32 v%d, v2, 10, v5" % vD)
    for p in range(1, 4): a("v_add_u32 v%d, %d, v%d" % (vD + p, p * (4096 - PITCH), vD))
    a("s_waitcnt lgkmcnt(0)")
    if opt.stamps: a("s_mov_b32 s%d, s%d" % (sST + 7, sST + 16))
    srd_build(a, sX, 72, 90, 114688)
    srd_build(a, sWQ, 78, 88, 0)
    a("s_sub_u32 s%d, %d, s88" % (sWQ + 2, 448 * 8192))
    srd_build(a, sK, 74, 87, 524288)
    g = Gen(opt); g.build()
    L = g.R.lines()
    ib = next(i for i, (k, t) in enumerate(L) if t is not None and t.startswith("v_mov_b32 v%d, 0x3f803f80" % ONES))
    def put(part):
        for k, t in part:
            if k in ("lab", "labpost"): a.label(t)
            else: a.lines.append(t)
    put(L[:ib])
    srd_build(a, sV, 76, 87, 524288)
    srd_build(a, sWOT, 80, 89, 2 * 229376)
    a("s_sub_u32 s%d, s%d, 480" % (sWO, sWOT)); a("s_subb_u32 s%d, s%d, 0" % (sWO + 1, sWOT + 1))
    a("s_mov_b32 s%d, %d" % (sWO + 2, 2 * 229376 + 480)); a("s_mov_b32 s%d, 0x00020000" % (sWO + 3))
    srd_build(a, sO, 82, 91, 114688)
    a("s_and_b32 s92, s%d, 1" % sWAVE); a("s_lshl_b32 s92, s92, 3"); a("s_and_b32 s94, s%d, 2" % sWAVE); a("s_lshl_b32 s94, s94, 1")
    a("s_add_u32 s92, s92, s94"); a("s_mul_i32 s%d, s92, 896" % sWOB)
    a("s_mul_i32 s%d, s93, 28672" % sT1); a("s_lshl_b32 s92, s%d, 13" % sWAVE); a("s_add_u32 s%d, s%d, s92" % (sT1, sT1))
    a("s_mov_b32 s%d, 0x3db8aa3b" % sC)
    a("s_mov_b32 s%d, 0x%x" % (sTHR, struct.unpack("<I", struct.pack("<f", opt.thr))[0]))
    a("v_and_b32 v3, 15, v1")
    a("v_mul_u32_u24 v3, %d, v3" % PITCH)
    a("v_lshrrev_b32 v4, 4, v1")
    a("v_lshl_add_u32 v%d, v4, 4, v3" % vKA[0])
    a("v_lshrrev_b32 v3, 2, v1")
    a("v_mul_u32_u24 v3, %d, v3" % PITCH)
    a("v_and_b32 v4, 1, v1")
    a("v_lshl_add_u32 v3, v4, 4, v3")
    a("v_bfe_u32 v4, v1, 1, 1")
    a("v_lshl_add_u32 v%d, v4, 3, v3" % vTR[0])
    for r in (1, 2):
        a("v_add_u32 v%d, %d, v%d" % (vKA[r], REGB[r], vKA[0]))
        a("v_add_u32 v%d, %d, v%d" % (vTR[r], REGB[r], vTR[0]))
    a("v_lshrrev_b32 v3, 4, v1")
    a("v_lshlrev_b32 v3, 14, v3")
    a("v_bfe_u32 v4, v1, 3, 1")
    a("v_lshl_add_u32 v3, v4, 9, v3")
    a("v_and_b32 v4, 7, v1")
    a("v_lshl_add_u32 v3, v4, 4, v3")
    a("v_sub_u32 v%d, v3, v5" % vDELTA)
    put(L[ib:])
    errs = check_hazards([t for k, t in L if k not in ("lab", "labpost", "cm")], "main")
    print("est cycles", g.R.cost, "hazard errors", errs)
    if opt.stamps:
        a("s_memrealtime s[%d:%d]" % (sST + 16, sST + 17)); a("s_waitcnt lgkmcnt(0)"); a("s_mov_b32 s%d, s%d" % (sST + 9, sST + 16))
    a("v_mbcnt_lo_u32_b32 v%d, -1, 0" % vT2)
    a("v_mbcnt_hi_u32_b32 v%d, -1, v%d" % (vT2, vT2))
    a("v_lshlrev_b32 v%d, 4, v%d" % (vT2, vT2))
    a("s_mul_i32 s%d, s%d, %d" % (sT0, sWAVE, 28 * 1024))
    a("s_nop 3")
    k = 0
    for half in range(2):
        for pr in range(7):
            for qb in range(2):
                tb = 16 * (k % 8); k += 1
                for o in range(2):
                    for r in range(4): a("v_accvgpr_read_b32 v%d, a%d" % (tb + 4 * o + r, OUT(half, 2 * pr + o, qb) + r))
                for i in range(4): a("v_cvt_pk_bf16_f32 v%d, v%d, v%d" % (tb + 8 + i, tb + 2 * i, tb + 2 * i + 1))
                ci = qb * 14 + half * 7 + pr
                a("s_add_u32 s%d, s%d, %d" % (sT1, sT0, ci * 1024))
                a("buffer_store_dwordx4 %s, v%d, %s, s%d offen" % (vr(tb + 8), vT2, sr(sO), sT1))
    if opt.stamps:
        a("s_waitcnt vmcnt(0)")
        a("s_memrealtime s[%d:%d]" % (sST + 16, sST + 17)); a("s_waitcnt lgkmcnt(0)"); a("s_mov_b32 s%d, s%d" % (sST + 10, sST + 16))
        a("s_add_u32 s%d, s82, 0x4000000" % sO); a("s_addc_u32 s%d, s83, 0" % (sO + 1)); a("s_mov_b32 s%d, 0x100000" % (sO + 2))
        a("s_lshl_b32 s%d, s2, 8" % sT0); a("s_lshl_b32 s%d, s%d, 6" % (sT1, sWAVE)); a("s_add_u32 s%d, s%d, s%d" % (sT0, sT0, sT1))
        for i in range(16): a("v_mov_b32 v%d, s%d" % (i, sST + i))
        a("v_mov_b32 v16, 0")
        for i in range(4): a("buffer_store_dwordx4 %s, v16, %s, s%d offen offset:%d" % (vr(4 * i), sr(sO), sT0, 16 * i))
    if opt.dbg:
        a("s_cmp_eq_u32 s2, %d" % opt.dbgwg); a("s_cbranch_scc0 L_exit")
        a("s_cmp_eq_u32 s%d, 0" % sWAVE); a("s_cbranch_scc0 L_exit")
        a("s_load_dwordx2 s[80:81], s[0:1], 48"); a("s_waitcnt lgkmcnt(0)")
        a("s_mov_b32 s%d, s80" % sO); a("s_mov_b32 s%d, s81" % (sO + 1)); a("s_mov_b32 s%d, 48" % (sO + 2))
        for i in range(3): a("buffer_store_dwordx4 %s, v16, %s, 0 offen offset:%d" % (vr(4 * i), sr(sO), 16 * i))
    a.label("L_exit")
    a("s_endpgm")
    a.label("L_code_end")
    rare_code(a, g.rare)
    red_kernel(a, opt)
    kernel_desc(a, "main_kernel", 512, 102, 256)
    kernel_desc(a, "red_kernel", 88, 32, 88)
    if opt.cyc: a.lines = [l.replace("s_memrealtime", "s_memtime") for l in a.lines]
    open(fn, "w").write("\n".join(l.strip() if not l.strip().startswith(".amdhsa_") or l.startswith(".amdhsa_kernel") else l for l in a.lines) + "\n")

if __name__ == "__main__":
    ap = argparse.ArgumentParser()
    ap.add_argument("out")
    ap.add_argument("--set", nargs="*", default=[])
    args = ap.parse_args()
    opt = Opt()
    for kvp in args.set:
        k, v = kvp.split("=")
        cur = getattr(Opt, k)
        setattr(opt, k, type(cur)(int(v)) if isinstance(cur, bool) else type(cur)(v))
    generate(opt, args.out)
```

```python
import sys, re, argparse, struct
from gl import Asm, kernel_begin, kernel_desc
from gen import It, V, E, SC, VM, gap_cost, check_hazards, vr, ar, sr, MF, srd_build

class Opt:
    PD = 6
    NS = 9
    bar2 = False
    stamps = False
    thr = 10.0
    ia = 5
    ib = 4
    maxper = 3
    wtouch = True
    wotouch_step = 16
    xnt = False
    map = 0
    red = True
    dbg = False
    dbgwg = 0
    nodma = False
    cyc = False
    nomf = False
    l2kv = False

PITCH = 1056
SLOT = 16 * PITCH
FR0 = 224
def P(j, qb): return 8 * j + 4 * qb
def Q(s, qb): return 128 + 8 * s + 4 * qb
def S(par, kb, qb): return 192 + 16 * par + 8 * kb + 4 * qb
def NEGM(qb): return 224 + 4 * qb
ONES = 232
vKA = [236, 237, 238]
vTR = [239, 240, 241]
vT0, vT1, vT2, vT3 = 242, 243, 244, 245
vD = 246
vW = 250
vDELTA = 254
vDUM = 255
def OUT(half, nb, qb): return (half * 14 + nb) * 8 + 4 * qb
REGB = [0, 4 * SLOT, 8 * SLOT]

sK, sV, sWQ, sWO, sX, sO = 4, 8, 12, 16, 20, 24
sB1, sT0, sT1, sC, sTHR, sWAVE, sWOB = 28, 29, 30, 31, 32, 33, 34
sRET = 36
sWOT = 40
sST = 48

ORDER = {"ds": 0, "vmw": 1, "bar": 2, "s": 3, "lgw": 3, "lab": 3, "vm": 4, "v": 5, "e": 5, "spost": 9, "labpost": 9}

class Tile:
    def __init__(self, kind, soff): self.kind, self.soff, self.slot = kind, soff, None

class Seg:
    def __init__(self, name, tile):
        self.name, self.tile = name, tile
        self.frags = []; self.mf = []
        self.bar = False; self.vmtags = []
        self.at = {}; self.vq = []; self.sq = []
        self.post = []
        self.dmagaps = None
    def put(self, gap, *items): self.at.setdefault(gap, []).extend(items)

class Emit:
    def __init__(self, opt):
        self.opt = opt; self.trace = []; self.fbase = 0; self.cost = 0
    def out(self, it): self.trace.append(it)
    def raw(self, *items):
        for it in items:
            self.out(it)
            if it.k not in ("lab", "labpost", "cm"): self.cost += 8 if it.k in ("e", "vm", "ds") else 4
    def freg(self, F): return FR0 + 4 * (F % 8)
    def reads_of(self, seg, f, F):
        r = self.freg(F)
        return [It("ds", tpl(r), ("f", F)) for tpl in seg.frags[f]]
    def head_reads(self, nxt, Fn):
        L = []
        if nxt is None: return L
        if nxt.bar: L.append((0, It("sync", None, nxt.vmtags)))
        for f in range(self.opt.PD):
            for it in self.reads_of(nxt, f, Fn + f): L.append((f, it))
        return L
    def prime(self, nxt):
        for f, it in self.head_reads(nxt, self.fbase):
            if it.k == "sync": self.raw(It("vmw", None, it.tag), It("bar", "s_barrier"))
            else: self.raw(it)
        self.raw(It("lgw", None, ("f", self.fbase + 1)))
    def seg(self, seg, nxt):
        PD = self.opt.PD
        nf = len(seg.frags); n = len(seg.mf); F0 = self.fbase
        assert nf % 2 == 0
        rq = []
        for f in range(PD, nf):
            for it in self.reads_of(seg, f, F0 + f): rq.append((f, it))
        for f, it in self.head_reads(nxt, F0 + nf): rq.append((nf + f, it))
        gaps = [[] for _ in range(n)]
        cf = -1
        for i in range(n):
            if seg.mf[i][0] is not None: cf = seg.mf[i][0]
            want = 99 if i == n - 1 else 1
            while rq and want > 0 and (rq[0][0] <= cf + PD or i == n - 1):
                f, it = rq.pop(0)
                assert it.k == "ds"
                gaps[i].append(it); want -= 1
                if rq and rq[0][1].k == "sync":
                    _, sy = rq.pop(0)
                    gaps[i].append(It("vmw", None, sy.tag)); gaps[i].append(It("bar", "s_barrier"))
                    break
            if i + 1 < n:
                fn = seg.mf[i + 1][0]
                if fn is not None and fn != cf and fn % 2 == 0 and fn > 0: gaps[i].append(It("lgw", None, ("f", F0 + fn + 1)))
            elif nxt is not None:
                gaps[i].append(It("lgw", None, ("f", F0 + nf + 1)))
        assert not rq
        if seg.bar and self.opt.bar2: gaps[0].append(It("bar", "s_barrier"))
        for g, items in seg.at.items(): gaps[g if g >= 0 else n + g].extend(items)
        def extra(g, it): return gap_cost(gaps[g] + [it]) - max(16, gap_cost(gaps[g]))
        def place(q):
            q = list(q)
            if not q: return
            for L in range(0, 400, 4):
                for start_over in range(n, -1, -1) if L else [0]:
                    tmp = {}; g = 0; ok = True
                    for it in q:
                        g = max(g, it.lo); hi = min(it.hi, n - 1)
                        while True:
                            if g > hi: ok = False; break
                            base = gaps[g] + tmp.get(g, [])
                            lim = max(16, gap_cost(gaps[g])) + (L if g >= start_over else max(0, L - 4))
                            if gap_cost(base + [it]) <= lim:
                                tmp.setdefault(g, []).append(it); break
                            g += 1
                        if not ok: break
                    if ok:
                        for g, its in tmp.items(): gaps[g].extend(its)
                        return
            raise AssertionError("cannot place in " + seg.name)
        place(seg.sq); place(seg.vq)
        self.out(It("cm", "; " + seg.name))
        for i in range(n):
            f, tpl = seg.mf[i]
            self.out(It("m", tpl.replace("{A}", ar(self.freg(F0 + f)) if f is not None else "")))
            items = sorted(gaps[i], key=lambda x: ORDER[x.k])
            self.cost += gap_cost([x for x in items])
            for it in items: self.out(it)
        self.fbase += nf
        self.raw(*seg.post)
    def lines(self):
        cnt = {"ds": 0, "vm": 0}; last = {}; L = []; started = False
        for it in self.trace:
            if it.k == "m": started = True
            if started and self.opt.nodma and it.k in ("vm", "vmw"): continue
            if started and self.opt.nomf and (it.k in ("m", "ds", "e", "lgw") or (it.k == "v" and not re.match(r"v_(add|sub|mbcnt|lshr|lshl|and|min|mul)\w*_[ub]32\S* v2[45]\d", it.t)) or (it.t or "").startswith("s_cbranch_vcc")): continue
            if it.k in ("ds", "vm"):
                cnt[it.k] += 1
                if it.tag is not None: last[it.tag] = cnt[it.k]
                L.append((it.k, it.t))
            elif it.k == "lgw":
                L.append(("s", "s_waitcnt lgkmcnt(%d)" % min(15, cnt["ds"] - last[it.tag])))
            elif it.k == "vmw":
                n = min(cnt["vm"] - last[tg] for tg in it.tag)
                L.append(("s", "s_waitcnt vmcnt(%d)" % min(63, n)))
            else: L.append((it.k, it.t))
        return L

def lds_addr(regs, tile, inner):
    off = tile.slot * SLOT
    r = 0 if tile.slot < 4 else 1 if tile.slot < 8 else 2
    return regs[r], off - REGB[r] + inner
def trpair(tile, o0, o1):
    def mk(o, d):
        def f(r):
            v, off = lds_addr(vTR, tile, o)
            return "ds_read_b64_tr_b16 %s, v%d offset:%d" % (ar(r + d, 2), v, off)
        return f
    return [mk(o0, 0), mk(o1, 2)]

class Gen:
    def __init__(self, opt):
        self.opt = opt; self.R = Emit(opt); self.rare = []
        self.kvpat = "k"; self.wpat = "wq"
    def xreg(self, phase, s, qb):
        if s >= 2: return ar(128 + 8 * (s - 2) + 4 * qb)
        if s == 0 or phase == "A": return vr(208 + 8 * s + 4 * qb)
        return vr(120 + 4 * qb)
    def qp_seg(self, ph, j, tile):
        s = Seg("%s qp%d" % (ph, j), tile)
        for db in range(16):
            s.frags.append(trpair(tile, db * 32, db * 32 + 512))
            for qb in range(2):
                d = (vr if ph == "A" else ar)(8 * db + 4 * qb)
                s.mf.append((db, "%s %s, {A}, %s, %s" % (MF, d, self.xreg(ph, j, qb), "0" if j == 0 else d)))
        if ph == "A": s.xtag = ("x", j)
        return s
    def sm_ops(self, j):
        par = j & 1; ex = []; cv = []
        for kb in range(2):
            for qb in range(2):
                for hlf in range(2):
                    b = S(par, kb, qb) + 2 * hlf
                    ex += ["v_exp_f32 v%d, v%d" % (b, b), "v_exp_f32 v%d, v%d" % (b + 1, b + 1)]
                    cv.append("v_cvt_pk_bf16_f32 v%d, v%d, v%d" % (P(j, qb) + 2 * kb + hlf, b, b + 1))
        return ex, cv
    def max_ops(self, j):
        a = [S(j & 1, 0, 0) + r for r in range(16)]
        L = ["v_max3_f32 v%d, v%d, v%d, v%d" % (vT0, a[0], a[1], a[2])]
        for i in range(3, 15, 2): L.append("v_max3_f32 v%d, v%d, v%d, v%d" % (vT0, vT0, a[i], a[i + 1]))
        L.append("v_max_f32 v%d, v%d, v%d" % (vT0, vT0, a[15]))
        L.append("v_cmp_lt_f32 vcc, s%d, v%d" % (sTHR, vT0))
        return L[:3], L[3:]
    def rare_branch(self, ph, j, post=True):
        self.rare.append((ph, j))
        return [It("spost" if post else "s", "s_cbranch_vccnz L_rs%s%d" % (ph, j)), It("labpost" if post else "lab", "L_rb%s%d" % (ph, j))]
    def init_ops(self):
        q = []; t = [vT0, vT1]; u = [vT2, vT3]
        for k in range(4):
            for qb in range(2):
                r = [S(0, kb, qb) + i for kb in range(2) for i in range(4)]
                if k == 0: q.append("v_max3_f32 v%d, v%d, v%d, v%d" % (t[qb], r[0], r[1], r[2]))
                elif k < 3: q.append("v_max3_f32 v%d, v%d, v%d, v%d" % (t[qb], t[qb], r[2 * k + 1], r[2 * k + 2]))
                else: q.append("v_max_f32 v%d, v%d, v%d" % (t[qb], t[qb], r[7]))
        for sw in ("32", "16"):
            for qb in range(2): q.append("v_mov_b32 v%d, v%d" % (u[qb], t[qb]))
            q.append("v_nop")
            for qb in range(2): q.append("v_permlane%s_swap_b32 v%d, v%d" % (sw, t[qb], u[qb]))
            for qb in range(2): q.append("v_max_f32 v%d, v%d, v%d" % (t[qb], t[qb], u[qb]))
        for qb in range(2):
            for r in range(4): q.append("v_sub_f32 v%d, 0, v%d" % (NEGM(qb) + r, t[qb]))
        for kb in range(2):
            for qb in range(2):
                for r in range(4): q.append("v_sub_f32 v%d, v%d, v%d" % (S(0, kb, qb) + r, S(0, kb, qb) + r, t[qb]))
        return q
    def qk_seg(self, ph, m, tile):
        par = m & 1
        s = Seg("%s qk%d" % (ph, m), tile)
        for kb in range(2):
            for ks in range(8):
                def f(r, o=kb * 512 + ks * 64):
                    v, off = lds_addr(vKA, tile, o)
                    return "ds_read_b128 %s, v%d offset:%d" % (ar(r), v, off)
                s.frags.append([f])
                for qb in range(2):
                    d = vr(S(par, kb, qb))
                    c = d if ks else ("0" if m == 0 else vr(NEGM(qb)))
                    s.mf.append((kb * 8 + ks, "%s %s, {A}, %s, %s" % (MF, d, vr(Q(ks, qb)), c)))
        if m >= 1:
            ex, cv = self.sm_ops(m - 1)
            for i in range(16): s.put(2 * i + 1, E(ex[i]))
            for k in range(7): s.put(4 * k + 4, V(cv[k]))
            m0, m1 = self.max_ops(m)
            for t, g in zip(m0, (22, 26, 30)): s.put(g, V(t))
        s.dmagaps = [2, 6, 10, 14, 18]
        return s
    def after_qk(self, ph, m, qk, pj):
        q = []
        if m >= 1: q.append(V(self.sm_ops(m - 1)[1][7]))
        if m == 0:
            pj.vq += [V(t, lo=3, hi=len(pj.mf) - 2) for t in self.init_ops()]
            return
        m0, m1 = self.max_ops(m)
        if pj is not None:
            pj.vq += q + [V(t, lo=3) for t in m1]
            for it in self.rare_branch(ph, m): pj.put(-1, it)
        else:
            qk.post += [SC("s_nop 0")] + q + [SC("s_nop 3")] + [V(t) for t in m1] + self.rare_branch(ph, m, False)
    def pv_seg(self, ph, c, t, tile, oacc, ll):
        s = Seg("%s pv%d.%d" % (ph, c, t), tile)
        for k in range(4):
            j = 4 * t + k
            if c == 0:
                for qb in range(2):
                    d = vr(ll(qb))
                    s.mf.append((None, "%s %s, %s, %s, %s" % (MF, d, vr(ONES), vr(P(j, qb)), "0" if j == 0 else d)))
            for db in range(4):
                s.frags.append(trpair(tile, 2 * k * 128 + db * 32, (2 * k + 1) * 128 + db * 32))
                for qb in range(2):
                    d = vr(oacc(db, qb))
                    s.mf.append((4 * k + db, "%s %s, {A}, %s, %s" % (MF, d, vr(P(j, qb)), "0" if j == 0 else d)))
        return s
    def op_seg(self, ph, i, tile, obf, zero):
        half = i & 1
        s = Seg("%s op%d" % (ph, i), tile)
        for nb in range(14):
            s.frags.append(trpair(tile, nb * 32, nb * 32 + 512))
            for qb in range(2):
                d = ar(OUT(half, nb, qb))
                s.mf.append((nb, "%s %s, {A}, %s, %s" % (MF, d, vr(obf(qb)), "0" if zero else d)))
        return s
    def norm_ops(self, u, oacc, dst, rl):
        q = []
        for o in range(2):
            for qb in range(2):
                b = oacc(2 * u + o, qb)
                for r in range(4): q.append("v_mul_f32 v%d, v%d, v%d" % (b + r, b + r, rl(qb)))
                for hlf in range(2): q.append("v_cvt_pk_bf16_f32 v%d, v%d, v%d" % (dst(qb) + 2 * o + hlf, b + 2 * hlf, b + 2 * hlf + 1))
        return q
    def dma(self, tile):
        pre = []
        if tile.kind in "kv":
            if tile.kind != self.kvpat:
                op = "v_add_u32" if tile.kind == "v" else "v_sub_u32"
                pre += [V("%s v%d, v%d, v%d" % (op, vD + p, vD + p, vDELTA)) for p in range(4)]
                self.kvpat = tile.kind
            vb, srd, nt = vD, (sK if tile.kind == "k" else sV), " nt"
        else:
            if tile.kind != self.wpat:
                w = vW
                pre += [V("v_mbcnt_lo_u32_b32 v%d, -1, 0" % w), V("v_mbcnt_hi_u32_b32 v%d, -1, v%d" % (w, w)),
                        V("v_lshrrev_b32 v%d, 5, v%d" % (w + 1, w)), V("v_and_b32 v%d, 31, v%d" % (w + 2, w)), V("v_min_u32 v%d, 27, v%d" % (w + 2, w + 2)),
                        V("v_mul_u32_u24 v%d, %d, v%d" % (w + 1, 16 * 896, w + 1)), V("v_lshl_add_u32 v%d, v%d, 4, v%d" % (w + 3, w + 2, w + 1)),
                        V("v_add_u32 v%d, s%d, v%d" % (w + 3, sWOB, w + 3))]
                pre += [V("v_add_u32 v%d, %d, v%d" % (w + p, 480 - 160 * p, w + 3)) for p in range(3)]
                self.wpat = tile.kind
            vb, srd, nt = vW, (sWQ if tile.kind == "wq" else sWO), ""
        pre += [SC("s_add_u32 m0, s%d, %d" % (sB1, tile.slot * SLOT)), SC("s_mov_b32 s%d, %d" % (sT0, tile.soff))]
        return (pre, [VM("buffer_load_dwordx4 v%d, %s, s%d offen offset:%d%s lds" % (vb + p, sr(srd), sT0, p * PITCH, nt), ("t", id(tile))) for p in range(4)])
    def spread(self, segs, G):
        nvm = sum(len(v) for _, v in G)
        if not nvm: return
        cand = []
        for s in segs:
            gl_ = s.dmagaps if s.dmagaps is not None else list(range(1, len(s.mf) - 1))
            cand += [(s, g) for g in gl_]
        if nvm > len(cand):
            cand = [(s, g) for s in segs for g in range(2, len(s.mf) - 1, 2)]
        assert nvm <= len(cand), (segs[0].name, nvm)
        k = 0; last = None
        for pre, vms in G:
            s, g = cand[k * len(cand) // nvm]
            same = last == (s, g - 1)
            for x in pre:
                s.put(g - 1, It("spost", x.t) if (same and x.k == "s") else x)
            for vm in vms:
                s, g = cand[k * len(cand) // nvm]
                s.put(g, vm); k += 1; last = (s, g)
    def stamp(self, k):
        if not self.opt.stamps: return []
        return [SC("s_memrealtime s[%d:%d]" % (sST + 16, sST + 17)), SC("s_waitcnt lgkmcnt(0)"), SC("s_mov_b32 s%d, s%d" % (sST + k, sST + 16))]

    def build(self):
        opt = self.opt; R = self.R
        wq = [[Tile("wq", h * 512 + j * 32 * 8192) for j in range(14)] for h in range(2)]
        wo = [[Tile("wo", h * 229376 + (i >> 1) * 32 * 896 + (i & 1) * 448) for i in range(16)] for h in range(2)]
        kt = [[Tile("k", h * 262144 + m * 16384) for m in range(16)] for h in range(2)]
        vt = [[Tile("v", h * 262144 + (n & 3) * 65536 + (n >> 2) * 128) for n in range(16)] for h in range(2)]
        if opt.l2kv:
            for t in kt[0] + kt[1] + vt[0] + vt[1]: t.soff &= 0xffff if t.kind == "k" else 0x1ff
        steps = []
        for j in range(14): steps.append([self.qp_seg("A", j, wq[0][j])])
        lastA = steps[-1][0]
        cvq = []
        for ks in range(8):
            for qb in range(2):
                for o in range(2):
                    b = 8 * (2 * ks + o) + 4 * qb
                    cvq += [V("v_mul_f32 v%d, s%d, v%d" % (b + r, sC, b + r)) for r in range(4)]
            for qb in range(2):
                for o in range(2):
                    b = 8 * (2 * ks + o) + 4 * qb
                    cvq += [V("v_cvt_pk_bf16_f32 v%d, v%d, v%d" % (Q(ks, qb) + 2 * o + hlf, b + 2 * hlf, b + 2 * hlf + 1)) for hlf in range(2)]
            cvq += [V("v_permlane32_swap_b32 v%d, v%d" % (Q(ks, qb) + i, Q(ks, qb) + 2 + i)) for qb in range(2) for i in range(2)]
        lastA.post += self.stamp(1) + cvq + self.stamp(2)
        for m in range(16):
            qk = self.qk_seg("B", m, kt[0][m])
            pj = self.qp_seg("B", m, wq[1][m]) if m < 14 else None
            if m == 0: qk.vq += [V("v_mov_b32 v%d, v%d" % (120 + i, 216 + i)) for i in range(8)]
            self.after_qk("B", m, qk, pj)
            steps.append([qk] + ([pj] if pj else []))
        ex, cv = self.sm_ops(15)
        tail = []
        for k in range(8): tail += [E(ex[2 * k]), E(ex[2 * k + 1])] + ([V(cv[k - 1])] if k else [])
        steps[-1][-1].post += tail + [SC("s_nop 0"), V(cv[7])] + self.stamp(3)
        oc = lambda db, qb: 192 + 8 * db + 4 * qb
        rlc = lambda qb: vT0 + qb
        q2 = []
        for ks in range(8):
            for qb in range(2):
                for o in range(2):
                    for hlf in range(2):
                        b = 8 * (2 * ks + o) + 4 * qb + 2 * hlf
                        q2 += [V("v_accvgpr_read_b32 v%d, a%d" % (vT2, b)), V("v_accvgpr_read_b32 v%d, a%d" % (vT3, b + 1)),
                               V("v_mul_f32 v%d, s%d, v%d" % (vT2, sC, vT2)), V("v_mul_f32 v%d, s%d, v%d" % (vT3, sC, vT3)),
                               V("v_cvt_pk_bf16_f32 v%d, v%d, v%d" % (Q(ks, qb) + 2 * o + hlf, vT2, vT3))]
                if qb == 1:
                    q2 += [V("v_permlane32_swap_b32 v%d, v%d" % (Q(ks, 0) + i, Q(ks, 0) + 2 + i)) for i in range(2)]
                    q2 += [V("v_permlane32_swap_b32 v%d, v%d" % (Q(ks, 1) + i, Q(ks, 1) + 2 + i)) for i in range(2)]
        for n in range(16):
            c, t = n >> 2, n & 3
            s = self.pv_seg("C", c, t, vt[0][n], oc, NEGM)
            s.vq += q2[22 * n: 22 * n + 22]
            if n == 3: s.vq += [E("v_rcp_f32 v%d, v%d" % (rlc(qb), NEGM(qb)), lo=36) for qb in range(2)]
            if t == 3:
                post = []
                for u in range(2):
                    if c < 3:
                        dst = lambda qb, u=u: oc(2 * u, qb)
                        ops = self.norm_ops(u, oc, dst, rlc)
                        post += [V(x) for x in ops]
                        post += [V("v_accvgpr_write_b32 a%d, v%d" % (128 + 8 * (2 * c + u) + 4 * qb + r, dst(qb) + r)) for qb in range(2) for r in range(4)]
                    else:
                        post += [V(x) for x in self.norm_ops(u, oc, lambda qb, u=u: P(14 + u, qb), rlc)]
                s.post += post
            steps.append([s])
        steps[-1][-1].post += self.stamp(4)
        for m in range(16):
            qk = self.qk_seg("D", m, kt[1][m])
            pj = self.op_seg("D", m, wo[0][m], lambda qb, u=m >> 1: P(8 + u, qb), m < 2)
            if m == 0: qk.vq += [V("v_accvgpr_read_b32 v%d, a%d" % (64 + i, 128 + i), hi=30) for i in range(48)]
            self.after_qk("D", m, qk, pj)
            steps.append([qk, pj])
        steps[-1][-1].post += self.stamp(5)
        oe = lambda db, qb: 128 + 8 * db + 4 * qb
        obf = lambda u: (lambda qb: 160 + 8 * u + 4 * qb)
        lle = lambda qb: 176 + 4 * qb
        rle = lambda qb: 188 + qb
        ex, cv = self.sm_ops(15)
        for t in range(4):
            s = self.pv_seg("E", 0, t, vt[1][t], oe, lle)
            if t < 2:
                for k in range(4 * t, 4 * t + 4): s.vq += [E(ex[2 * k]), E(ex[2 * k + 1])] + ([V(cv[k - 1])] if k else [])
            if t == 2: s.vq += [V(cv[7])]
            if t == 3:
                s.vq += [E("v_rcp_f32 v%d, v%d" % (rle(qb), lle(qb)), lo=36) for qb in range(2)]
                s.post += [V(x) for x in self.norm_ops(0, oe, obf(0), rle)] + [SC("s_nop 1")] + self.stamp(6)
            steps.append([s])
        for c in range(1, 4):
            for t in range(4):
                i = 4 * (c - 1) + t
                op = self.op_seg("E", i, wo[1][i], obf((i >> 1) & 1), False)
                pv = self.pv_seg("E", c, t, vt[1][4 * c + t], oe, lle)
                if t == 0: op.vq += [V(x) for x in self.norm_ops(1, oe, obf(1), rle)]; op.dmagaps = []
                if t == 3: op.vq += [V(x, lo=1, hi=26) for x in self.norm_ops(0, oe, obf(0), rle)]; op.dmagaps = []
                steps.append([op, pv] if t == 0 else [pv, op])
        steps[-1][-1].post += self.stamp(8)
        for i in range(12, 16):
            op = self.op_seg("E", i, wo[1][i], obf((i >> 1) & 1), False)
            if i == 12: op.vq += [V(x) for x in self.norm_ops(1, oe, obf(1), rle)]
            steps.append([op])
        cons = [s.tile for st in steps for s in st]
        early = kt[0][:opt.ib]
        order = cons[:opt.ia] + early + [t for t in cons[opt.ia:] if t not in early]
        free = list(range(opt.NS)); ptr = 0; reqstep = {}
        pro = []
        while free:
            order[ptr].slot = free.pop(0); pro.append(order[ptr]); reqstep[id(order[ptr])] = -2; ptr += 1
        issue = []
        for si, st in enumerate(steps):
            if si > 0: free += [s.tile.slot for s in steps[si - 1]]
            L = []
            while free and ptr < len(order) and len(L) < opt.maxper:
                order[ptr].slot = free.pop(0); L.append(order[ptr]); reqstep[id(order[ptr])] = si; ptr += 1
            issue.append(L)
            for s in st: assert reqstep[id(s.tile)] <= si - 2, (s.name, si, reqstep[id(s.tile)])
            st[0].bar = True; st[0].vmtags = [("t", id(s.tile)) for s in st] + [s.xtag for s in st if hasattr(s, "xtag")]
        xn = " nt" if opt.xnt else ""
        def xload(s):
            return [VM("buffer_load_dwordx4 %s, v%d, %s, 0 offen offset:%d%s" % (self.xreg("A", s, qb), 6 + qb, sr(sX), 64 * s, xn), ("x", s)) for qb in range(2)]
        def issue_now(t):
            pre, vms = self.dma(t); R.raw(*pre); R.raw(*vms)
        R.raw(*xload(0)); R.raw(*xload(1))
        issue_now(pro[0])
        if opt.wtouch:
            R.raw(VM("buffer_load_dword v%d, v8, %s, 0 offen" % (vDUM, sr(sWQ))))
        R.raw(VM("global_load_dword v%d, v9, s[%d:%d]" % (vDUM, sRET, sRET + 1)))
        nx = 2
        for k, t in enumerate(pro[1:]):
            issue_now(t)
            if nx < 14:
                R.raw(*xload(nx)); R.raw(*xload(nx + 1)); nx += 2
            if k == 5: R.raw(SC("s_waitcnt vmcnt(40)"))
        assert nx >= 14
        for r in range(4): R.raw(V("v_mov_b32 v%d, 0x3f803f80" % (ONES + r)))
        for si, st in enumerate(steps):
            G = [self.dma(t) for t in issue[si]]
            if opt.wtouch and si == opt.wotouch_step:
                G.append(([V("v_mbcnt_lo_u32_b32 v%d, -1, 0" % vDUM), V("v_mbcnt_hi_u32_b32 v%d, -1, v%d" % (vDUM, vDUM)), V("v_lshlrev_b32 v%d, 7, v%d" % (vDUM, vDUM))],
                          [VM("buffer_load_dword v%d, v%d, %s, s%d offen" % (vDUM, vDUM, sr(sWOT), sT1))]))
            self.spread(st, G)
        flat = [s for st in steps for s in st]
        R.prime(flat[0]); R.raw(*self.stamp(0))
        for k, s in enumerate(flat):
            R.seg(s, flat[k + 1] if k + 1 < len(flat) else None)

def rare_code(a, sites):
    for (ph, j) in sites:
        a.label("L_rs%s%d" % (ph, j))
        a("s_call_b64 s[%d:%d], L_rare%d" % (sRET, sRET + 1, j & 1))
        a("s_call_b64 s[%d:%d], L_scale%d" % (sRET, sRET + 1, j - 1))
        a("s_branch L_rb%s%d" % (ph, j))
    t = [vT0, vT1]; u = [vT2, vT3]
    for par in range(2):
        a.label("L_rare%d" % par)
        for qb in range(2):
            r = [S(par, kb, qb) + i for kb in range(2) for i in range(4)]
            a("v_max3_f32 v%d, v%d, v%d, v%d" % (t[qb], r[0], r[1], r[2]))
            a("v_max3_f32 v%d, v%d, v%d, v%d" % (t[qb], t[qb], r[3], r[4]))
            a("v_max3_f32 v%d, v%d, v%d, v%d" % (t[qb], t[qb], r[5], r[6]))
            a("v_max_f32 v%d, v%d, v%d" % (t[qb], t[qb], r[7]))
        for sw in ("32", "16"):
            for qb in range(2): a("v_mov_b32 v%d, v%d" % (u[qb], t[qb]))
            a("s_nop 1")
            for qb in range(2): a("v_permlane%s_swap_b32 v%d, v%d" % (sw, t[qb], u[qb]))
            for qb in range(2): a("v_max_f32 v%d, v%d, v%d" % (t[qb], t[qb], u[qb]))
        for qb in range(2):
            a("v_ceil_f32 v%d, v%d" % (t[qb], t[qb]))
            a("v_max_f32 v%d, 0, v%d" % (t[qb], t[qb]))
            for r in range(4): a("v_sub_f32 v%d, v%d, v%d" % (NEGM(qb) + r, NEGM(qb) + r, t[qb]))
            for kb in range(2):
                for r in range(4): a("v_sub_f32 v%d, v%d, v%d" % (S(par, kb, qb) + r, S(par, kb, qb) + r, t[qb]))
            a("v_min_f32 v%d, 0x437f0000, v%d" % (u[qb], t[qb]))
            a("v_cvt_u32_f32 v%d, v%d" % (u[qb], u[qb]))
            a("v_mul_u32_u24 v%d, 0x800080, v%d" % (u[qb], u[qb]))
        a("s_setpc_b64 s[%d:%d]" % (sRET, sRET + 1))
    for j in range(14, -1, -1):
        a.label("L_scale%d" % j)
        for qb in range(2):
            for r in range(4): a("v_pk_sub_u16 v%d, v%d, v%d clamp" % (P(j, qb) + r, P(j, qb) + r, u[qb]))
    a("s_nop 1")
    a("s_setpc_b64 s[%d:%d]" % (sRET, sRET + 1))

HEADER = """; Fused MHA block: out = softmax((x Wq) K^T / 16) V Wo   (B=32, Sq=128, D=448, H=16, Sk=512, Dh=256)
"""

def red_kernel(a, opt):
    kernel_begin(a, "red_kernel")
    if opt.dbg: a("s_memrealtime s[28:29]")
    a("s_cmp_ge_u32 s2, 448")
    a("s_cbranch_scc1 L_rexit")
    a("s_load_dwordx2 s[4:5], s[0:1], 56")
    a("s_load_dwordx2 s[6:7], s[0:1], 40")
    a("v_lshrrev_b32 v2, 6, v0")
    a("v_and_b32 v1, 63, v0")
    a("v_readfirstlane_b32 s3, v2")
    a("s_lshl_b32 s8, s2, 2")
    a("s_add_u32 s8, s8, s3")
    a("s_mul_i32 s9, s8, 18725")
    a("s_lshr_b32 s9, s9, 20")
    a("s_mul_i32 s10, s9, 56")
    a("s_sub_u32 s10, s8, s10")
    a("s_mul_i32 s11, s10, 37")
    a("s_lshr_b32 s11, s11, 8")
    a("s_mul_i32 s12, s11, 7")
    a("s_sub_u32 s12, s10, s12")
    a("s_mul_i32 s13, s9, %d" % (8 * 114688))
    a("s_lshl_b32 s14, s10, 11")
    a("s_add_u32 s13, s13, s14")
    a("s_mul_i32 s15, s9, 114688")
    a("s_mul_i32 s16, s11, %d" % (16 * 896))
    a("s_add_u32 s15, s15, s16")
    a("s_lshl_b32 s16, s12, 7")
    a("s_add_u32 s15, s15, s16")
    a("v_lshlrev_b32 v3, 4, v1")
    a("v_and_b32 v4, 15, v1")
    a("v_mul_u32_u24 v4, 896, v4")
    a("v_lshrrev_b32 v5, 4, v1")
    a("v_lshl_add_u32 v4, v5, 4, v4")
    a("s_waitcnt lgkmcnt(0)")
    a("s_mov_b32 s20, s4"); a("s_mov_b32 s21, s5"); a("s_mov_b32 s22, %d" % (256 * 114688)); a("s_mov_b32 s23, 0x00020000")
    a("s_mov_b32 s24, s6"); a("s_mov_b32 s25, s7"); a("s_mov_b32 s26, %d" % (32 * 114688)); a("s_mov_b32 s27, 0x00020000")
    for p in range(8):
        for c in range(2):
            r = 8 + (c * 8 + p) * 4
            a("buffer_load_dwordx4 %s, v3, s[20:23], s13 offen offset:%d" % (vr(r), c * 1024))
        if p < 7: a("s_add_u32 s13, s13, 114688")
    acc = 72
    for p in range(8):
        a("s_waitcnt vmcnt(%d)" % (14 - 2 * p))
        for c in range(2):
            r = 8 + (c * 8 + p) * 4
            for j in range(4):
                d = acc + 8 * c + 2 * j
                if p == 0:
                    a("v_lshlrev_b32 v%d, 16, v%d" % (d, r + j)); a("v_and_b32 v%d, 0xffff0000, v%d" % (d + 1, r + j))
                else:
                    a("v_lshlrev_b32 v6, 16, v%d" % (r + j)); a("v_and_b32 v7, 0xffff0000, v%d" % (r + j))
                    a("v_add_f32 v%d, v%d, v6" % (d, d)); a("v_add_f32 v%d, v%d, v7" % (d + 1, d + 1))
    for c in range(2):
        for j in range(4): a("v_cvt_pk_bf16_f32 v%d, v%d, v%d" % (8 + 4 * c + j, acc + 8 * c + 2 * j, acc + 8 * c + 2 * j + 1))
    a("s_nop 1")
    for c in range(2):
        a("v_permlane32_swap_b32 v%d, v%d" % (8 + 4 * c, 10 + 4 * c))
        a("v_permlane32_swap_b32 v%d, v%d" % (9 + 4 * c, 11 + 4 * c))
    for c in range(2):
        a("buffer_store_dwordx4 %s, v4, s[24:27], s15 offen offset:%d" % (vr(8 + 4 * c), 64 * c))
    if opt.dbg:
        a("s_waitcnt vmcnt(0)")
        a("s_memrealtime s[30:31]")
        a("s_cmp_eq_u32 s8, 1791"); a("s_cbranch_scc0 L_rexit")
        a("s_load_dwordx2 s[6:7], s[0:1], 48"); a("s_waitcnt lgkmcnt(0)")
        a("s_add_u32 s20, s4, 0x%x" % (0x4000000 + opt.dbgwg * 256)); a("s_addc_u32 s21, s5, 0"); a("s_mov_b32 s22, 64")
        a("s_mov_b32 s24, s6"); a("s_mov_b32 s25, s7"); a("s_mov_b32 s26, 64")
        a("v_mov_b32 v10, 0")
        for i in range(3): a("buffer_load_dwordx4 %s, v10, s[20:23], 0 offen offset:%d" % (vr(12 + 4 * i), 16 * i))
        a("v_mov_b32 v24, s28"); a("v_mov_b32 v25, s30"); a("v_mov_b32 v26, 0"); a("v_mov_b32 v27, 0")
        a("s_waitcnt vmcnt(0)")
        for i in range(14):
            if i != 7: a("v_sub_u32 v%d, v%d, v19" % (12 + i, 12 + i))
        for i in range(4): a("buffer_store_dwordx4 %s, v10, s[24:27], 0 offen offset:%d" % (vr(12 + 4 * i), 16 * i))
    a.label("L_rexit")
    a("s_endpgm")

def generate(opt, fn):
    a = Asm()
    for l in HEADER.strip().split("\n"): a.lines.append(l)
    a.lines.append("; @launch kernel=main_kernel grid=(256,1,1) block=(256,1,1) lds=%d" % (opt.NS * SLOT))
    if opt.red: a.lines.append("; @launch kernel=red_kernel grid=(448,1,1) block=(256,1,1) lds=0")
    a('.amdgcn_target "amdgcn-amd-amdhsa--gfx950"')
    kernel_begin(a, "main_kernel")
    a("s_cmp_ge_u32 s2, 256")
    a("s_cbranch_scc1 L_exit")
    a("s_load_dwordx8 s[72:79], s[0:1], 0")
    a("s_load_dwordx2 s[80:81], s[0:1], 32")
    a("s_load_dwordx2 s[82:83], s[0:1], 56")
    if opt.stamps:
        a("s_memrealtime s[%d:%d]" % (sST + 16, sST + 17))
    a("v_lshrrev_b32 v2, 6, v0")
    a("v_and_b32 v1, 63, v0")
    a("v_readfirstlane_b32 s%d, v2" % sWAVE)
    if opt.map == 0:
        a("s_and_b32 s84, s2, 3"); a("s_lshl_b32 s84, s84, 1"); a("s_bfe_u32 s85, s2, 0x10003"); a("s_add_u32 s84, s84, s85")
        a("s_bfe_u32 s85, s2, 0x10002"); a("s_lshl_b32 s85, s85, 4"); a("s_lshr_b32 s93, s2, 4"); a("s_add_u32 s85, s85, s93")
        ng = 16
    else:
        a("s_and_b32 s84, s2, 7"); a("s_lshr_b32 s85, s2, 3"); a("s_lshr_b32 s93, s2, 4")
        ng = 16
    a("s_lshl_b32 s86, s85, 3")
    a("s_add_u32 s86, s86, s84")
    a("s_lshl_b32 s87, s86, 19")
    a("s_lshl_b32 s88, s84, 10")
    a("s_mul_i32 s89, s84, %d" % (2 * 229376))
    a("s_mul_i32 s90, s85, 114688")
    a("s_mul_i32 s91, s86, 114688")
    a("v_and_b32 v3, 15, v1")
    a("v_lshl_add_u32 v4, v2, 5, v3")
    a("v_mul_u32_u24 v4, 896, v4")
    a("v_lshrrev_b32 v5, 4, v1")
    a("v_lshl_add_u32 v6, v5, 4, v4")
    a("v_add_u32 v7, %d, v6" % (16 * 896))
    a("v_lshrrev_b32 v10, 5, v1")
    a("v_and_b32 v11, 31, v1")
    a("v_lshlrev_b32 v11, 4, v11")
    a("v_lshl_add_u32 v11, v10, 15, v11")
    a("v_lshl_add_u32 v%d, v2, 16, v11" % vW)
    for p in range(1, 4): a("v_add_u32 v%d, %d, v%d" % (vW + p, p * (8192 - PITCH), vW))
    a("s_mul_i32 s%d, s%d, %d" % (sB1, sWAVE, 4 * PITCH))
    a("v_lshrrev_b32 v8, 3, v0")
    a("s_mul_i32 s92, s93, 28")
    a("v_add_u32 v8, s92, v8")
    a("v_lshlrev_b32 v8, 13, v8")
    a("v_and_b32 v9, 7, v0")
    a("v_lshl_add_u32 v8, v9, 7, v8")
    a("s_getpc_b64 s[%d:%d]" % (sRET, sRET + 1))
    a.label("L_pc")
    a("s_sub_u32 s%d, s%d, L_pc-main_kernel" % (sRET, sRET))
    a("s_subb_u32 s%d, s%d, 0" % (sRET + 1, sRET + 1))
    a("s_lshr_b32 s92, s2, 3")
    a("s_lshl_b32 s92, s92, 12")
    a("v_lshrrev_b32 v9, 3, v0")
    a("v_lshlrev_b32 v9, 7, v9")
    a("v_add_u32 v9, s92, v9")
    a("v_min_u32 v9, L_code_end-main_kernel-4, v9")
    a("v_lshlrev_b32 v5, 4, v1")
    a("v_lshl_add_u32 v%d, v2, 10, v5" % vD)
    for p in range(1, 4): a("v_add_u32 v%d, %d, v%d" % (vD + p, p * (4096 - PITCH), vD))
    a("s_waitcnt lgkmcnt(0)")
    if opt.stamps: a("s_mov_b32 s%d, s%d" % (sST + 7, sST + 16))
    srd_build(a, sX, 72, 90, 114688)
    srd_build(a, sWQ, 78, 88, 0)
    a("s_sub_u32 s%d, %d, s88" % (sWQ + 2, 448 * 8192))
    srd_build(a, sK, 74, 87, 524288)
    g = Gen(opt); g.build()
    L = g.R.lines()
    ib = next(i for i, (k, t) in enumerate(L) if t is not None and t.startswith("v_mov_b32 v%d, 0x3f803f80" % ONES))
    def put(part):
        for k, t in part:
            if k in ("lab", "labpost"): a.label(t)
            else: a.lines.append(t)
    put(L[:ib])
    srd_build(a, sV, 76, 87, 524288)
    srd_build(a, sWOT, 80, 89, 2 * 229376)
    a("s_sub_u32 s%d, s%d, 480" % (sWO, sWOT)); a("s_subb_u32 s%d, s%d, 0" % (sWO + 1, sWOT + 1))
    a("s_mov_b32 s%d, %d" % (sWO + 2, 2 * 229376 + 480)); a("s_mov_b32 s%d, 0x00020000" % (sWO + 3))
    srd_build(a, sO, 82, 91, 114688)
    a("s_and_b32 s92, s%d, 1" % sWAVE); a("s_lshl_b32 s92, s92, 3"); a("s_and_b32 s94, s%d, 2" % sWAVE); a("s_lshl_b32 s94, s94, 1")
    a("s_add_u32 s92, s92, s94"); a("s_mul_i32 s%d, s92, 896" % sWOB)
    a("s_mul_i32 s%d, s93, 28672" % sT1); a("s_lshl_b32 s92, s%d, 13" % sWAVE); a("s_add_u32 s%d, s%d, s92" % (sT1, sT1))
    a("s_mov_b32 s%d, 0x3db8aa3b" % sC)
    a("s_mov_b32 s%d, 0x%x" % (sTHR, struct.unpack("<I", struct.pack("<f", opt.thr))[0]))
    a("v_and_b32 v3, 15, v1")
    a("v_mul_u32_u24 v3, %d, v3" % PITCH)
    a("v_lshrrev_b32 v4, 4, v1")
    a("v_lshl_add_u32 v%d, v4, 4, v3" % vKA[0])
    a("v_lshrrev_b32 v3, 2, v1")
    a("v_mul_u32_u24 v3, %d, v3" % PITCH)
    a("v_and_b32 v4, 1, v1")
    a("v_lshl_add_u32 v3, v4, 4, v3")
    a("v_bfe_u32 v4, v1, 1, 1")
    a("v_lshl_add_u32 v%d, v4, 3, v3" % vTR[0])
    for r in (1, 2):
        a("v_add_u32 v%d, %d, v%d" % (vKA[r], REGB[r], vKA[0]))
        a("v_add_u32 v%d, %d, v%d" % (vTR[r], REGB[r], vTR[0]))
    a("v_lshrrev_b32 v3, 4, v1")
    a("v_lshlrev_b32 v3, 14, v3")
    a("v_bfe_u32 v4, v1, 3, 1")
    a("v_lshl_add_u32 v3, v4, 9, v3")
    a("v_and_b32 v4, 7, v1")
    a("v_lshl_add_u32 v3, v4, 4, v3")
    a("v_sub_u32 v%d, v3, v5" % vDELTA)
    put(L[ib:])
    errs = check_hazards([t for k, t in L if k not in ("lab", "labpost", "cm")], "main")
    print("est cycles", g.R.cost, "hazard errors", errs)
    if opt.stamps:
        a("s_memrealtime s[%d:%d]" % (sST + 16, sST + 17)); a("s_waitcnt lgkmcnt(0)"); a("s_mov_b32 s%d, s%d" % (sST + 9, sST + 16))
    a("v_mbcnt_lo_u32_b32 v%d, -1, 0" % vT2)
    a("v_mbcnt_hi_u32_b32 v%d, -1, v%d" % (vT2, vT2))
    a("v_lshlrev_b32 v%d, 4, v%d" % (vT2, vT2))
    a("s_mul_i32 s%d, s%d, %d" % (sT0, sWAVE, 28 * 1024))
    a("s_nop 3")
    k = 0
    for half in range(2):
        for pr in range(7):
            for qb in range(2):
                tb = 16 * (k % 8); k += 1
                for o in range(2):
                    for r in range(4): a("v_accvgpr_read_b32 v%d, a%d" % (tb + 4 * o + r, OUT(half, 2 * pr + o, qb) + r))
                for i in range(4): a("v_cvt_pk_bf16_f32 v%d, v%d, v%d" % (tb + 8 + i, tb + 2 * i, tb + 2 * i + 1))
                ci = qb * 14 + half * 7 + pr
                a("s_add_u32 s%d, s%d, %d" % (sT1, sT0, ci * 1024))
                a("buffer_store_dwordx4 %s, v%d, %s, s%d offen" % (vr(tb + 8), vT2, sr(sO), sT1))
    if opt.stamps:
        a("s_waitcnt vmcnt(0)")
        a("s_memrealtime s[%d:%d]" % (sST + 16, sST + 17)); a("s_waitcnt lgkmcnt(0)"); a("s_mov_b32 s%d, s%d" % (sST + 10, sST + 16))
        a("s_add_u32 s%d, s82, 0x4000000" % sO); a("s_addc_u32 s%d, s83, 0" % (sO + 1)); a("s_mov_b32 s%d, 0x100000" % (sO + 2))
        a("s_lshl_b32 s%d, s2, 8" % sT0); a("s_lshl_b32 s%d, s%d, 6" % (sT1, sWAVE)); a("s_add_u32 s%d, s%d, s%d" % (sT0, sT0, sT1))
        for i in range(16): a("v_mov_b32 v%d, s%d" % (i, sST + i))
        a("v_mov_b32 v16, 0")
        for i in range(4): a("buffer_store_dwordx4 %s, v16, %s, s%d offen offset:%d" % (vr(4 * i), sr(sO), sT0, 16 * i))
    a.label("L_exit")
    a("s_endpgm")
    a.label("L_code_end")
    rare_code(a, g.rare)
    red_kernel(a, opt)
    kernel_desc(a, "main_kernel", 512, 102, 256)
    kernel_desc(a, "red_kernel", 88, 32, 88)
    if opt.cyc: a.lines = [l.replace("s_memrealtime", "s_memtime") for l in a.lines]
    open(fn, "w").write("\n".join(l.strip() if not l.strip().startswith(".amdhsa_") or l.startswith(".amdhsa_kernel") else l for l in a.lines) + "\n")

if __name__ == "__main__":
    ap = argparse.ArgumentParser()
    ap.add_argument("out")
    ap.add_argument("--set", nargs="*", default=[])
    args = ap.parse_args()
    opt = Opt()
    for kvp in args.set:
        k, v = kvp.split("=")
        cur = getattr(Opt, k)
        setattr(opt, k, type(cur)(int(v)) if isinstance(cur, bool) else type(cur)(v))
    generate(opt, args.out)
```
